```python
import torch

def _softmax(x, axis=-1):
    return torch.softmax(x, dim=axis)
def _gelu(x):
    return torch.nn.functional.gelu(x, approximate="tanh")
def _silu(x):
    return torch.nn.functional.silu(x)
def _sigmoid(x):
    return torch.sigmoid(x)
def _layernorm(x, axis=-1, eps=1e-5):
    m = x.mean(dim=axis, keepdim=True)
    v = x.var(dim=axis, keepdim=True, unbiased=False)
    return (x - m) / torch.sqrt(v + eps)
def _scatter_add(tgt, idx, src, axis=0):
    return tgt.clone().index_add_(axis, idx, src)
def _segment_sum(src, seg, n):
    out = torch.zeros((n,) + src.shape[1:], dtype=src.dtype)
    return out.index_add_(0, seg, src)
def _pad(x, pw):
    flat = tuple(v for pair in reversed(pw) for v in pair)
    return torch.nn.functional.pad(x, flat)

kernel_name = 'standalone__deep_cross_pnn__recsys'

def setup_inputs():

    _w = (lambda a: (lambda t: t.to(torch.bfloat16) if t.is_floating_point() else t)(torch.as_tensor(a)))
    B, F, D, V = 1024, 100, 128, min(1000, 100000)
    H = 4 * D
    return {
        "idx": _w((lambda lo, hi, *s: torch.randint(lo, hi, s))(0, V, B, F).to(torch.int64)),
        "table": _w((lambda *s: torch.randn(*s, dtype=torch.bfloat16) * 3.2)(V, D) * (D ** -0.5)),
        "w_p": _w((lambda *s: torch.randn(*s, dtype=torch.bfloat16) * 0.1)(F * F) * ((F * F) ** -0.5)),
        "w1": _w((lambda *s: torch.randn(*s, dtype=torch.bfloat16) * 3.2)(F * D, H) * ((F * D) ** -0.5)),
        "b1": _w((lambda *s: torch.randn(*s, dtype=torch.bfloat16) * 3.2)(H) * 0.01),
        "w2": _w((lambda *s: torch.randn(*s, dtype=torch.bfloat16) * 0.1)(H) * (H ** -0.5)),
        "b2": _w((lambda *s: torch.randn(*s, dtype=torch.bfloat16) * 0.1)(1) * 0.01),
    }

def reference(idx, table, w_p, w1, b1, w2, b2):
    emb = table[idx]
    B = emb.shape[0]; F = emb.shape[1]; D = emb.shape[2]
    ip = torch.einsum('bid,bjd->bij', emb, emb)
    ip = ip.reshape(B, F * F)
    logit_p = ip @ w_p
    z = emb.reshape(B, F * D)
    h = _gelu(z @ w1 + b1)
    logit_d = h @ w2 + b2
    return logit_p + logit_d
```

```python
import re

def regs_of(tok):
    tok = tok.strip()
    if tok.startswith('-') or tok.startswith('|'):
        tok = tok.strip('-|')
    m = re.fullmatch(r'([vas])\[(\d+):(\d+)\]', tok)
    if m:
        return [f"{m.group(1)}{i}" for i in range(int(m.group(2)), int(m.group(3)) + 1)]
    if re.fullmatch(r'[vas]\d+', tok):
        return [tok]
    if tok in ('vcc', 'exec', 'm0'):
        return [tok]
    if tok in ('vcc_lo', 'vcc_hi'): return ['vcc']
    if tok in ('exec_lo', 'exec_hi'): return ['exec']
    return []

TRANS = ('v_exp_f32', 'v_rcp_f32', 'v_log_f32', 'v_rsq_f32', 'v_sqrt_f32')

class Ins:
    __slots__ = ('text', 'op', 'cls', 'w', 'r', 'srcc', 'passes', 'states', 'dpp', 'stdata', 'ldsdma')
    def __init__(self, text):
        self.text = text
        t = text.split(';')[0].strip()
        self.w = []; self.r = []; self.srcc = []; self.passes = 0; self.states = 1
        self.dpp = False; self.stdata = []; self.ldsdma = False
        if not t or t.endswith(':') or t.startswith('.'):
            self.op = ''; self.cls = 'label'; self.states = 0
            return
        parts = t.split(None, 1)
        op = parts[0]; self.op = op
        rest = parts[1] if len(parts) > 1 else ''
        ops = [x.strip() for x in re.split(r',(?![^\[]*\])', rest)] if rest else []
        mods = ''
        if ops:
            sp = ops[-1].split(None, 1)
            if len(sp) > 1:
                ops[-1] = sp[0]; mods = sp[1]
        R = [regs_of(x) for x in ops]
        flat = lambda L: [y for x in L for y in x]
        if op == 's_nop':
            self.cls = 'nop'; self.states = int(ops[0]) + 1
        elif op.startswith('v_mfma'):
            self.cls = 'mfma'; self.w = R[0]; self.r = R[1] + R[2]; self.srcc = R[3]
            self.passes = 8 if '32x32x16' in op else 4
        elif op.startswith('v_'):
            self.cls = 'valu'
            self.dpp = '_dpp' in op
            if op.startswith('v_permlane'):
                self.w = R[0] + R[1]; self.r = R[0] + R[1]
            elif op.startswith('v_cmp'):
                self.w = R[0]; self.r = flat(R[1:])
            else:
                self.w = R[0]; self.r = flat(R[1:])
                if op.startswith(('v_fmac', 'v_dot2c', 'v_mac')): self.r += R[0]
                if op.startswith('v_cndmask') and len(ops) == 3: self.r += ['vcc']
                if '_co_' in op: self.w += R[1]
                if op.startswith('v_dot2_'): self.srcc = R[3]
        elif op.startswith('ds_'):
            self.cls = 'ds'
            if op.startswith('ds_read') or '_rtn' in op:
                self.w = R[0]; self.r = flat(R[1:])
            else:
                self.r = flat(R)
        elif op.startswith(('buffer_', 'global_')):
            self.cls = 'vmem'
            isl = re.search(r'\blds\b', mods) is not None
            if isl:
                self.ldsdma = True; self.r = flat(R) + ['m0']
            elif 'store' in op or ('atomic' in op and 'sc0' not in mods):
                self.r = flat(R)
                if 'x4' in op or 'x3' in op:
                    self.stdata = R[0] if op.startswith('buffer_') else R[1]
            else:
                self.w = R[0]; self.r = flat(R[1:])
        elif op.startswith('s_'):
            self.cls = 'salu'
            if op.startswith(('s_cmp', 's_waitcnt', 's_barrier', 's_branch', 's_cbranch', 's_endpgm', 's_setpc', 's_sleep', 's_setprio')):
                self.r = flat(R)
            else:
                self.w = R[0] if R else []; self.r = flat(R[1:])
                if 'saveexec' in op: self.w += ['exec']
        else:
            raise ValueError("unknown instr " + text)

def need(p, c):
    n = 0
    pw = set(p.w)
    cr = set(c.r) | set(c.srcc)
    cw = set(c.w)
    if p.cls == 'valu':
        isdot = p.op.startswith('v_dot')
        vw = {x for x in pw if x[0] in 'va' and x != 'vcc'}
        sw = pw - vw
        if c.cls == 'mfma' and vw & cr: n = max(n, 3 if isdot else 2)
        if c.cls == 'valu':
            if c.dpp and vw & cr: n = max(n, 2)
            if c.op.startswith('v_permlane') and vw & cr: n = max(n, 2)
            if c.op.startswith(('v_readlane', 'v_readfirstlane')) and vw & cr: n = max(n, 1)
            if sw & cr: n = max(n, 2)
            if c.op.startswith(('v_readlane', 'v_writelane')) and sw & cr: n = max(n, 4)
            if p.op.startswith(TRANS) and vw & cr: n = max(n, 1)
            if isdot:
                if c.op == p.op:
                    if vw & (set(c.r) - set(c.srcc)): n = max(n, 3)
                elif vw & (cr | cw): n = max(n, 3)
            if 'exec' in sw:
                n = max(n, 5 if c.dpp else 0, 4 if c.op.startswith(('v_readlane', 'v_readfirstlane', 'v_writelane', 'v_permlane')) else 0)
        if isdot and c.cls in ('ds', 'vmem') and vw & cr: n = max(n, 3)
        if c.cls == 'vmem' and sw & cr: n = max(n, 5)
        if c.cls == 'mfma' and 'exec' in sw: n = max(n, 4)
        if c.op.startswith('s_cbranch_vcc') and 'vcc' in sw: n = max(n, 5)
    if p.cls == 'salu':
        if 'm0' in pw and c.ldsdma: n = max(n, 1)
    if p.cls == 'mfma':
        big = p.passes == 8
        if c.cls == 'mfma':
            if pw & set(c.r): n = max(n, 12 if big else 8)
            if pw & set(c.srcc):
                if not (c.srcc == p.w and c.passes == p.passes): n = max(n, 10 if big else 6)
            elif pw & cw: n = max(n, 12 if big else 8)
        elif c.cls in ('valu', 'ds', 'vmem'):
            if pw & (cr | cw): n = max(n, 12 if big else 8)
        if c.cls == 'valu' and set(p.srcc) & cw: n = max(n, 7 if big else 3)
    if p.cls == 'vmem' and p.stdata:
        if set(p.stdata) & cw: n = max(n, 2 if c.cls == 'valu' else 1)
    return n

def check(inss, pad=False, label=''):
    out = []; viol = []
    for c in inss:
        if c.cls != 'label':
            d = 0; req = 0
            for p in reversed(out):
                if d >= 13: break
                if p.cls == 'label': continue
                n = need(p, c)
                if n - d > req:
                    req = n - d; who = p
                d += p.states
            if req > 0:
                if pad:
                    out.append(Ins(f"s_nop {req-1}"))
                else:
                    viol.append((label, who.text, c.text, req))
        out.append(c)
    return out, viol

class Asm:
    def __init__(self):
        self.L = []
        self.dsq = []
        self.vmq = []
    def I(self, s):
        for line in s.strip('\n').split('\n'):
            line = line.strip()
            if line: self.L.append(Ins(line))
    def ds(self, tag, s):
        self.I(s); self.dsq.append(tag)
    def vm(self, tag, s):
        self.I(s); self.vmq.append(tag)
    @staticmethod
    def _cnt(q, tags):
        last = -1
        for i, t in enumerate(q):
            if t in tags: last = i
        if last < 0: return None
        return len(q) - 1 - last
    def wait(self, ds=(), vm=(), dsall=False, vmall=False, force=None):
        nd = 0 if dsall else self._cnt(self.dsq, set(ds))
        nv = 0 if vmall else self._cnt(self.vmq, set(vm))
        if force is not None:
            fv, fd = force
            if nv is not None: assert fv is not None and fv <= nv, (fv, nv)
            if nd is not None: assert fd is not None and fd <= nd, (fd, nd)
            nv, nd = fv, fd
        s = ''
        if nv is not None:
            nv = min(nv, 63); s += f' vmcnt({nv})'; self.vmq = self.vmq[len(self.vmq) - nv:] if nv < len(self.vmq) else self.vmq
            if nv == 0: self.vmq = []
        if nd is not None:
            nd = min(nd, 15); s += f' lgkmcnt({nd})'; self.dsq = self.dsq[len(self.dsq) - nd:] if nd < len(self.dsq) else self.dsq
            if nd == 0: self.dsq = []
        if s: self.I('s_waitcnt' + s)
        return (nv, nd)
    def text(self):
        return '\n'.join(('' if i.cls == 'label' else '  ') + i.text for i in self.L) + '\n'
```

```python
KN = "standalone__deep_cross_pnn__recsys_kernel"
def header(grid=256, block=256, lds=0):
    return f"""; generated
; @launch grid=({grid},1,1) block=({block},1,1) lds={lds}
.amdgcn_target "amdgcn-amd-amdhsa--gfx950"
.text
.globl {KN}
.p2align 8
.type {KN},@function
{KN}:
"""
def footer(vgpr=512, accum=256, sgpr=102):
    return f"""
.section .rodata,"a"
.p2align 6
.amdhsa_kernel {KN}
  .amdhsa_next_free_vgpr {vgpr}
  .amdhsa_next_free_sgpr {sgpr}
  .amdhsa_accum_offset {accum}
  .amdhsa_group_segment_fixed_size 0
  .amdhsa_kernarg_size 80
  .amdhsa_user_sgpr_count 2
  .amdhsa_user_sgpr_kernarg_segment_ptr 1
  .amdhsa_system_sgpr_workgroup_id_x 1
.end_amdhsa_kernel
"""
```

```python
import sys
from asmlib import *
from common import KN, footer

OPT = dict(stamps=0, pnn=1, pollat=14, dbgmode=0)
for a in sys.argv[2:]:
    k, v = a.split('='); OPT[k] = int(v)

L_TAB = 0
L_IDX = 66560
L_W = 119808
L_E = 144384
L_SCR = 160768
L_TOTAL = 161024
sIDXP, sTABP, sWPP, sW1P, sB1P, sW2P, sB2P, sOUTP, sDBGP, sWSP = 4, 6, 8, 10, 12, 14, 16, 18, 20, 22
rIDX, rTAB, rWP, rW1, rWS = 24, 28, 32, 36, 40
sW, sX, sJ, sQ, sNT, sMT = 44, 45, 46, 47, 48, 49
sB = [50, 51, 52, 53]
sMUL = 54
sSJ = 56
sEM0 = 58
sT0, sT1, sT2, sT3 = 59, 60, 61, 62
sXL = [64, 65, 66, 67]
sXS = 68
sCNT = 69
sST = 72
sC10, sC01 = 70, 71
def srd(r): return f"s[{r}:{r+3}]"
def sp(r): return f"s[{r}:{r+1}]"
vLane = 1; vB0 = 2; vB1 = 3; vSel = 4; vIA = [5, 6]; vX = [7, 8]; vI24 = [9, 10]
vCpre = [11, 12, 13, 14]; vEr = [15, 16, 17, 18]; vEidx = 19
vIE = 20
vDma = [24, 25, 26, 27]
vXld = 28; vT6 = 29; vCnt = 30; vZero = 31
ACC0 = 32
RAW = 64
BF = 128
EMB = 160
TMP = 192
IDX = 196
ADDR = 204
vB1v = 212
vW2v = 216
vB2v = 220
vPois = 224
vT = 228
AE = 96
def vr(b, n=4): return f"v[{b}:{b+n-1}]"
def ar(b, n=4): return f"a[{b}:{b+n-1}]"
def acc(tau, c):
    return vr(ACC0 + 16 * c, 16) if tau == 0 else ar((tau - 1) * 32 + 16 * c, 16)
def raw(slot, t, d=None):
    b = RAW + 16 * slot + 4 * t
    return vr(b) if d is None else f"v{b+d}"
def bf(buf, d, t=None):
    b = BF + 16 * buf + 4 * d
    return vr(b) if t is None else f"v{b+t}"

nst = [0]
def stamp(A):
    if OPT['stamps']:
        A.I(f"s_memtime {sp(sST + 2 * nst[0])}")
        nst[0] += 1

def bload(A, n, t, sreg):
    A.vm(('raw', n, t), f"buffer_load_dwordx4 {raw(n & 3, t)}, v{vB0 if t < 2 else vB1}, {srd(rW1)}, s{sreg} offen" + (" offset:2048" if t & 1 else ""))

def xf_dpp(n, t, d): return f"v_mov_b32_dpp v{TMP+d}, {raw(n & 3, t, d)} row_ror:8 row_mask:0xf bank_mask:0xf"
def xf_perm(n, t, d): return f"v_perm_b32 {bf(n & 1, d, t)}, v{TMP+d}, {raw(n & 3, t, d)}, v{vSel}"
def xf_swap(n, t, c): return f"v_permlane16_swap_b32 {bf(n & 1, 2*c, t)}, {bf(n & 1, 2*c+1, t)}"
def embread(A, n, k):
    tau, s = k >> 1, k & 1
    A.ds(('emb', n, k), f"ds_read_b128 {vr(EMB + 4*k)}, v{ADDR + 4*(n & 1) + tau}" + (" offset:32" if s else ""))
def addr_ops(n, step):
    e = n & 3; r = []
    for hh in range(2):
        a = ADDR + 4 * (n & 1) + 2 * hh; b = a + 1
        if step == 0:
            if e == 0: r.append(f"v_mad_u32_u24 v{a}, v{IDX + 4*hh + e}, s{sMUL}, v{vX[hh]}")
            else: r.append(f"v_mul_u32_u24 v{a}, 65, v{IDX + 4*hh + e}")
        elif step == 1: r.append(f"v_and_b32 v{a}, -16, v{a}")
        elif step == 2: r.append(f"v_add_u32 v{b}, 16, v{a}")
        else: r.append(f"v_permlane32_swap_b32 v{a}, v{b}")
    return r
def mfma(n, tau, s, c):
    return f"v_mfma_f32_32x32x16_bf16 {acc(tau, c)}, {bf(n & 1, 2*c+s)}, {vr(EMB + 4*(2*tau+s))}, {acc(tau, c)}"

class W:
    def __init__(self): self.sites = {}; self.mode = 'rec'
    def __call__(self, A, site, **kw):
        if self.mode == 'rec':
            nv, nd = A.wait(**kw)
            o = self.sites.get(site, (None, None))
            mn = lambda a, b: b if a is None else (a if b is None else min(a, b))
            self.sites[site] = (mn(o[0], nv), mn(o[1], nd))
        else:
            A.wait(force=self.sites[site], **kw)

def body(A, m, WT):
    for e in range(4):
        n = 4 * m + e
        for g in range(16):
            tau, s, c = g >> 2, (g >> 1) & 1, g & 1
            A.I(mfma(n, tau, s, c))
            t, ph = g >> 2, g & 3
            dma = None
            if e == 0 and t in (1, 2): dma = 2 * (t - 1) + (ph >> 1)
            if dma is not None and ph in (0, 2):
                A.I(f"s_mov_b32 m0, s{sEM0}" if dma == 0 else "s_add_u32 m0, m0, 1024")
            if ph == 0:
                for d in range(4): A.I(xf_dpp(n + 1, t, d))
                if e == 3:
                    if t == 0: WT(A, ('ie', e), ds=[('ie', m + 1)])
                    A.I(f"v_lshl_add_u32 v{vDma[t]}, v{vIE+t}, 8, v{vCpre[t]}")
            elif ph == 1:
                embread(A, n + 1, g >> 1)
                for d in range(3): A.I(xf_perm(n + 1, t, d))
            elif ph == 2:
                A.I(xf_perm(n + 1, t, 3))
                bload(A, n + 5, t, sB[e])
                if e == 2 and t == 0:
                    WT(A, ('idx', e), ds=[('idx', m + 1)])
                for x in addr_ops(n + 2, t): A.I(x)
                if t == 3:
                    A.I(f"s_add_u32 s{sB[e]}, s{sB[e]}, {16*131072}")
            else:
                embread(A, n + 1, g >> 1)
                for c2 in range(2): A.I(xf_swap(n + 1, t, c2))
            if e == 1:
                if g in (0, 1): A.I(f"v_add_u32 v{vIA[g]}, 64, v{vIA[g]}")
                if g == 4: A.I(f"v_add_u32 v{vEidx}, 64, v{vEidx}")
                if g in (4, 5): A.ds(('idx', m + 1), f"ds_read_b128 {vr(IDX + 4*(g-4))}, v{vIA[g-4]}")
                if g == 8: A.ds(('ie', m + 1), f"ds_read_b128 {vr(vIE)}, v{vEidx}")
            if dma is not None and ph in (1, 3):
                A.vm(('dma', m, dma), f"buffer_load_dwordx4 v{vDma[dma]}, {srd(rTAB)}, 0 offen lds")
            if ph == 3:
                if t < 3:
                    dst = [('emb', n, 2*t+2), ('emb', n, 2*t+3)]
                    if e == 0 and t == 0: dst += [('eread', m - 1)]
                    WT(A, ('g', e, t), ds=dst, vm=[('raw', n + 1, t + 1)])
                else:
                    vmt = [('raw', n + 2, 0)]
                    if e == 3: vmt += [('dma', m, 3)]
                    WT(A, ('g', e, t), ds=[('emb', n + 1, 0), ('emb', n + 1, 1)], vm=vmt)

def side(A, m):
    for ks in range(4):
        A.ds(('eread', m), f"ds_read_b128 {ar(AE + 16*m + 4*ks)}, v{vEr[ks]}")
    if m == 0:
        for q in range(4):
            A.vm('pois', f"buffer_store_dwordx4 {vr(vPois)}, v{vXld}, {srd(rWS)}, s{sXL[q]} offen sc1")
    if m == 1:
        assert 'pois' not in A.vmq
        A.I(f"""
        s_barrier
        s_cmp_lg_u32 s{sW}, 0
        s_cbranch_scc1 Lnoatom
        s_mov_b64 exec, 1
        global_atomic_add v{vT}, v{vT+1}, {sp(sDBGP)} sc1
        s_mov_b64 exec, -1
        Lnoatom:
        """)
    if m == 2:
        for ks in range(4):
            A.vm('t6', f"buffer_load_dwordx4 {ar(AE + 96 + 4*ks)}, v{vT6}, {srd(rTAB)}, 0 offen offset:{64*ks}")
    if m == 3:
        A.I(f"s_mul_i32 s{sT0}, s{sW}, {3*131072}")
        A.I(f"s_sub_u32 s{sB[3]}, s{sB[3]}, s{sT0}")
    if m == 4:
        A.I(f"s_mov_b32 s{sMUL}, 0")
        for hh in range(2):
            A.I(f"v_mul_u32_u24 v{vX[hh]}, 65, v{vI24[hh]}")
        A.vm('cnt', f"global_load_dword v{vCnt}, v{vT+2}, {sp(sDBGP)} sc1")

def prologue(A):
    A.I(f"""
    s_cmp_ge_u32 s2, 256
    s_cbranch_scc1 Lend
    """)
    stamp(A)
    A.I(f"""
    s_load_dwordx16 s[4:19], s[0:1], 0
    s_load_dwordx4 s[20:23], s[0:1], 64
    v_and_b32 v{vLane}, 63, v0
    v_lshrrev_b32 v{vT}, 6, v0
    s_and_b32 s{sX}, s2, 7
    v_readfirstlane_b32 s{sW}, v{vT}
    s_lshr_b32 s{sJ}, s2, 3
    s_lshr_b32 s{sQ}, s{sX}, 1
    s_and_b32 s{sNT}, s{sX}, 1
    s_lshl_b32 s{sNT}, s{sNT}, 2
    s_lshr_b32 s{sT0}, s{sJ}, 3
    s_add_u32 s{sNT}, s{sNT}, s{sT0}
    s_and_b32 s{sMT}, s{sJ}, 7
    """)
    A.I(f"""
    v_and_b32 v{vT}, 16, v{vLane}
    v_lshrrev_b32 v{vT+1}, 2, v{vLane}
    v_and_b32 v{vT+1}, 8, v{vT+1}
    v_add_u32 v{vT}, v{vT}, v{vT+1}
    v_bfe_u32 v{vT+1}, v{vLane}, 3, 1
    v_add_u32 v{vT}, v{vT}, v{vT+1}
    v_and_b32 v{vT+2}, 7, v{vLane}
    v_lshlrev_b32 v{vT+2}, 4, v{vT+2}
    v_lshl_add_u32 v{vB0}, v{vT}, 10, v{vT+2}
    v_add_u32 v{vB1}, 4096, v{vB0}
    v_mov_b32 v{vSel}, 0x05040100
    v_mov_b32 v{vT+3}, 0x03020706
    v_cmp_eq_u32 vcc, 1, v{vT+1}
    s_lshl_b32 s{sT0}, s{sQ}, 15
    s_lshl_b32 s{sT1}, s{sNT}, 7
    v_cndmask_b32 v{vSel}, v{vSel}, v{vT+3}, vcc
    s_add_u32 s{sT0}, s{sT0}, s{sT1}
    s_lshl_b32 s{sT1}, s{sW}, 19
    s_add_u32 s{sT0}, s{sT0}, s{sT1}
    """)
    A.I(f"""
    v_lshrrev_b32 v{vT+4}, 2, v{vLane}
    v_lshlrev_b32 v{vT+4}, 8, v{vT+4}
    v_and_b32 v{vT+6}, 3, v{vLane}
    v_lshl_add_u32 v{vT+4}, v{vT+6}, 4, v{vT+4}
    s_lshl_b32 s{sT1}, s{sQ}, 6
    v_add_u32 v{vT+4}, s{sT1}, v{vT+4}
    v_lshlrev_b32 v{vT+5}, 4, v{vLane}
    s_add_u32 s{sB[0]}, s{sT0}, {1*131072}
    s_add_u32 s{sB[1]}, s{sT0}, {2*131072}
    s_add_u32 s{sB[2]}, s{sT0}, {3*131072}
    s_mov_b32 s{sB[3]}, s{sT0}
    s_waitcnt lgkmcnt(0)
    """)
    for r, p, size in ((rW1, sW1P, 13107200), (rIDX, sIDXP, 409600), (rTAB, sTABP, 256000), (rWP, sWPP, 20000), (rWS, sWSP, 4194304)):
        A.I(f"s_mov_b32 s{r}, s{p}\ns_mov_b32 s{r+1}, s{p+1}\ns_mov_b32 s{r+2}, {size}\ns_mov_b32 s{r+3}, 0x20000")
        if r == rW1:
            for t in range(4): bload(A, 0, t, sB[3])
    stamp(A)
    A.I(f"""
    s_lshr_b32 s{sT1}, s{sJ}, 3
    s_mul_i32 s{sT1}, s{sT1}, 13
    s_add_u32 s{sT1}, s{sT1}, s{sW}
    s_lshl_b32 s{sT1}, s{sT1}, 10
    s_mul_i32 s{sT2}, s{sMT}, 51200
    """)
    for k in range(13):
        A.I(f"""
        s_add_u32 m0, s{sT1}, {L_IDX}
        s_add_u32 s{sT3}, s{sT1}, s{sT2}
        """)
        A.vm('fill', f"buffer_load_dwordx4 v{vT+5}, {srd(rIDX)}, s{sT3} offen lds")
        if k < 12:
            A.I(f"""
            s_add_u32 s{sT1}, s{sT1}, 4096
            s_sub_u32 s{sT3}, s{sT1}, {52*1024}
            s_cselect_b32 s{sT1}, s{sT1}, s{sT3}
            """)
    A.I(f"""
    s_lshl_b32 s{sT1}, s{sJ}, 1
    s_add_u32 s{sT1}, s{sT1}, s{sW}
    """)
    for i in range(16):
        A.I(f"""
        s_and_b32 s{sT1}, s{sT1}, 63
        s_mul_i32 m0, s{sT1}, 1040
        s_lshl_b32 s{sT3}, s{sT1}, 12
        """)
        A.vm('fill', f"buffer_load_dwordx4 v{vT+4}, {srd(rTAB)}, s{sT3} offen lds")
        if i < 15: A.I(f"s_add_u32 s{sT1}, s{sT1}, 4")
    for n in (1, 2, 3):
        for t in range(4): bload(A, n, t, sB[n - 1])
    for e in range(4):
        A.I(f"s_add_u32 s{sB[e]}, s{sB[e]}, {16*131072}")
    A.I(f"s_mul_i32 s{sT1}, s{sW}, 6144")
    for i in range(6):
        A.I(f"s_add_u32 m0, s{sT1}, {L_W + 1024*i}\ns_add_u32 s{sT3}, s{sT1}, {1024*i}")
        A.vm('wdma', f"buffer_load_dwordx4 v{vT+5}, {srd(rWP)}, s{sT3} offen lds")
    A.I(f"""
    v_lshrrev_b32 v{vT}, 5, v{vLane}
    v_lshlrev_b32 v{vT}, 7, v{vT}
    v_bfe_u32 v{vT+1}, v{vLane}, 3, 2
    v_lshl_add_u32 v{vT}, v{vT+1}, 4, v{vT}
    v_bfe_u32 v{vT+1}, v{vLane}, 2, 1
    v_lshl_add_u32 v{vT}, v{vT+1}, 6, v{vT}
    s_lshl_b32 s{sT1}, s{sW}, 8
    v_add_u32 v{vT}, s{sT1}, v{vT}
    v_mov_b32 v{vZero}, 0
    """)
    A.vm('misc', f"global_load_dwordx4 {vr(vB1v)}, v{vT}, {sp(sB1P)}")
    A.vm('misc', f"global_load_dwordx4 {vr(vW2v)}, v{vT}, {sp(sW2P)}")
    A.vm('misc', f"global_load_ushort v{vB2v}, v{vZero}, {sp(sB2P)}")
    stamp(A)
    for i in range(32): A.I(f"v_mov_b32 v{ACC0+i}, 0")
    for i in range(96): A.I(f"v_accvgpr_write_b32 a{i}, 0")
    A.I(f"""
    v_lshrrev_b32 v{vT}, 5, v{vLane}
    v_add_u32 v{vT}, s{sW}, v{vT}
    v_and_b32 v{vT+1}, 31, v{vLane}
    s_lshl_b32 s{sT1}, s{sW}, 4
    s_add_u32 s{sT1}, s{sT1}, {L_IDX}
    s_mul_i32 s{sT2}, s{sW}, 12
    s_movk_i32 s{sT3}, 400
    """)
    for hh in range(2):
        A.I(f"""
        v_add_u32 v{vT+2}, {2*hh}, v{vT}
        v_and_b32 v{vT+2}, 3, v{vT+2}
        v_lshl_add_u32 v{vT+2}, v{vT+2}, 5, v{vT+1}
        v_mul_u32_u24 v{vT+2}, s{sT3}, v{vT+2}
        v_add_u32 v{vIA[hh]}, s{sT1}, v{vT+2}
        v_subrev_u32 v{vT+8+hh}, s{sT2}, v{vIA[hh]}
        v_mov_b32 v{vX[hh]}, 0
        """)
    A.I(f"""
    s_lshl_b32 s{sT1}, s{sNT}, 2
    s_add_u32 s{sT1}, s{sT1}, s{sQ}
    s_lshl_b32 s{sT2}, s{sMT}, 5
    s_add_u32 s{sT2}, s{sT2}, s{sT1}
    s_lshl_b32 s{sXL[0]}, s{sT2}, 14
    s_add_u32 s{sXL[1]}, s{sXL[0]}, 4096
    s_add_u32 s{sXL[2]}, s{sXL[0]}, 8192
    s_add_u32 s{sXL[3]}, s{sXL[0]}, 12288
    s_lshl_b32 s{sT1}, s{sT1}, 2
    s_add_u32 s{sT1}, s{sT1}, s{sW}
    s_mul_i32 s{sT1}, s{sT1}, 400
    s_add_u32 s{sT1}, s{sT1}, {L_IDX}
    v_and_b32 v{vT}, 48, v{vLane}
    v_add_u32 v{vEidx}, s{sT1}, v{vT}
    v_and_b32 v{vT+1}, 15, v{vLane}
    v_and_b32 v{vT+2}, 3, v{vLane}
    v_lshlrev_b32 v{vT+2}, 2, v{vT+2}
    v_add_u32 v{vT+10}, s{sT1}, v{vT+2}
    s_lshl_b32 s{sEM0}, s{sW}, 12
    s_add_u32 s{sEM0}, s{sEM0}, {L_E}
    v_lshlrev_b32 v{vXld}, 4, v0
    s_movk_i32 s{sMUL}, 65
    """)
    A.I(f"""
    v_lshrrev_b32 v{vT+2}, 2, v{vT}
    v_xor_b32 v{vT+2}, v{vT+2}, v{vT+1}
    v_lshlrev_b32 v{vCpre[0]}, 4, v{vT+2}
    v_xor_b32 v{vCpre[1]}, 16, v{vCpre[0]}
    v_xor_b32 v{vCpre[2]}, 32, v{vCpre[0]}
    v_xor_b32 v{vCpre[3]}, 48, v{vCpre[0]}
    """)
    A.I(f"""
    v_lshrrev_b32 v{vT+2}, 4, v{vLane}
    v_xor_b32 v{vT+2}, v{vT+2}, v{vT+1}
    v_lshlrev_b32 v{vT+2}, 4, v{vT+2}
    v_and_b32 v{vT+3}, 3, v{vLane}
    v_lshl_add_u32 v{vT+2}, v{vT+3}, 10, v{vT+2}
    v_lshrrev_b32 v{vT+3}, 2, v{vT+1}
    v_lshl_add_u32 v{vT+2}, v{vT+3}, 8, v{vT+2}
    v_add_u32 v{vEr[0]}, s{sEM0}, v{vT+2}
    v_xor_b32 v{vEr[1]}, 64, v{vEr[0]}
    v_xor_b32 v{vEr[2]}, 0x80, v{vEr[0]}
    v_xor_b32 v{vEr[3]}, 0xc0, v{vEr[0]}
    """)
    for i in range(4): A.I(f"v_mov_b32 v{vPois+i}, -1")
    A.I(f"""
    s_getpc_b64 {sp(sSJ)}
    Lpcref:
    s_add_u32 s{sSJ}, s{sSJ}, Lside0-Lpcref
    s_addc_u32 s{sSJ+1}, s{sSJ+1}, 0
    """)
    A.wait(vm=[('raw', 0, 3)])
    for t in range(4):
        for d in range(4): A.I(xf_dpp(0, t, d))
        for d in range(4): A.I(xf_perm(0, t, d))
    for t in range(4):
        for c in range(2): A.I(xf_swap(0, t, c))
    for t in range(4): bload(A, 4, t, sB[3])
    A.I(f"s_add_u32 s{sB[3]}, s{sB[3]}, {16*131072}")
    A.wait(vm=['fill'])
    A.I("s_barrier")
    stamp(A)
    for hh in range(2):
        A.ds(('idx', 0), f"ds_read_b128 {vr(IDX + 4*hh)}, v{vIA[hh]}")
    for hh in range(2):
        A.ds('i24', f"ds_read_b32 v{vI24[hh]}, v{vT+8+hh} offset:384")
    A.ds(('ie', 0), f"ds_read_b128 {vr(vIE)}, v{vEidx}")
    A.ds('t6i', f"ds_read_b32 v{vT6}, v{vT+10} offset:384")
    A.wait(ds=[('idx', 0)])
    for st in range(4):
        for x in addr_ops(0, st): A.I(x)
    for k in range(8): embread(A, 0, k)
    for st in range(4):
        for x in addr_ops(1, st): A.I(x)
    A.wait(ds=['t6i'])
    for i in range(4):
        A.I(f"v_lshl_add_u32 v{vDma[i]}, v{vIE+i}, 8, v{vCpre[i]}")
    A.I(f"""
    v_and_b32 v{vT}, 48, v{vLane}
    v_lshl_add_u32 v{vT6}, v{vT6}, 8, v{vT}
    v_and_b32 v{vT}, 12, v{vLane}
    v_cmp_ne_u32 vcc, 0, v{vT}
    v_mov_b32 v{vT+1}, 0x7fff0000
    s_lshl_b32 s{sT1}, s{sMT}, 5
    v_cndmask_b32 v{vT6}, v{vT6}, v{vT+1}, vcc
    s_lshr_b32 s{sT2}, s{sNT}, 1
    s_lshl_b32 s{sT2}, s{sT2}, 3
    s_add_u32 s{sT2}, s{sT2}, s{sT1}
    v_mov_b32 v{vT}, s{sT2}
    v_mov_b32 v{vT+1}, 1
    s_lshl_b32 s{sT2}, s{sW}, 3
    s_add_u32 s{sT2}, s{sT2}, s{sT1}
    v_mov_b32 v{vT+2}, s{sT2}
    """)
    A.wait(dsall=True, vm=[('raw', 1, 0)])
    stamp(A)

def tail(A):
    n = 24
    stamp(A)
    vImg = [vT + 4, vT + 5, vT + 6]; vImgR = vT + 7
    A.I(f"v_lshlrev_b32 v{vImgR}, 4, v{vLane}")
    for tau in (1, 2, 3):
        A.I(f"""
        s_add_u32 s{sT0}, s{sW}, {tau}
        s_and_b32 s{sT0}, s{sT0}, 3
        s_mul_i32 s{sT0}, s{sT0}, 24576
        s_add_u32 s{sT0}, s{sT0}, {(tau-1)*8192}
        v_add_u32 v{vImg[tau-1]}, s{sT0}, v{vImgR}
        """)
    A.I(f"s_mul_i32 s{sT0}, s{sW}, 24576\nv_add_u32 v{vImgR}, s{sT0}, v{vImgR}")
    A.wait(dsall=True)
    A.I("s_barrier")
    order = [1, 2, 3, 0]
    pend = []
    for i, tau in enumerate(order):
        for g in range(4):
            A.I(mfma(n, tau, g >> 1, g & 1))
            if i >= 1 and g >= 1 or (i >= 2):
                for _ in range(2 if g < 3 else 3):
                    if pend: A.ds('imgw', pend.pop(0))
        if tau:
            for i2 in range(8):
                pend.append(f"ds_write_b128 v{vImg[tau-1]}, {ar((tau-1)*32 + 4*i2)} offset:{1024*i2}")
    while pend: A.ds('imgw', pend.pop(0))
    vXst = vT + 8
    A.I(f"""
    v_bfe_u32 v{vXst}, v{vLane}, 2, 3
    v_lshlrev_b32 v{vXst}, 14, v{vXst}
    v_lshrrev_b32 v{vT+9}, 5, v{vLane}
    v_lshl_add_u32 v{vXst}, v{vT+9}, 6, v{vXst}
    v_and_b32 v{vT+9}, 3, v{vLane}
    v_lshl_add_u32 v{vXst}, v{vT+9}, 4, v{vXst}
    s_lshl_b32 s{sXS}, s{sMT}, 2
    s_add_u32 s{sXS}, s{sXS}, s{sW}
    s_lshl_b32 s{sXS}, s{sXS}, 17
    s_lshl_b32 s{sT0}, s{sQ}, 12
    s_add_u32 s{sXS}, s{sXS}, s{sT0}
    s_lshl_b32 s{sT0}, s{sNT}, 9
    s_add_u32 s{sXS}, s{sXS}, s{sT0}
    """)
    A.wait(vmall=True)
    A.I(f"""
    s_mov_b32 s{sCNT}, 0x40000
    Lchk:
    v_readfirstlane_b32 s{sT0}, v{vCnt}
    s_cmp_ge_u32 s{sT0}, 8
    s_cbranch_scc1 Lchkok
    global_load_dword v{vCnt}, v{vT+2}, {sp(sDBGP)} sc1
    s_sub_u32 s{sCNT}, s{sCNT}, 1
    s_waitcnt vmcnt(0)
    s_cbranch_scc0 Lchk
    Lchkok:
    """)
    A.wait(dsall=True)
    A.I("s_barrier")
    stamp(A)
    IMG = RAW
    for sg in range(3):
        for i2 in range(8):
            A.ds(('imgr', sg, i2), f"ds_read_b128 {vr(IMG + 32*sg + 4*i2)}, v{vImgR} offset:{8192*sg + 1024*i2}")
    for sg in range(3):
        for i2 in range(8):
            if i2 % 2 == 0:
                A.wait(ds=[('imgr', sg, i2 + 1)])
            for r in range(4):
                A.I(f"v_add_f32 v{ACC0 + 4*i2 + r}, v{ACC0 + 4*i2 + r}, v{IMG + 32*sg + 4*i2 + r}")
    ST = EMB
    for u in range(4):
        for d in range(4):
            c, hi = d >> 1, d & 1
            A.I(f"v_cvt_pk_bf16_f32 v{ST + 4*u + d}, v{ACC0 + 16*c + u + 8*hi}, v{ACC0 + 16*c + u + 8*hi + 4}")
        A.vm('xst', f"buffer_store_dwordx4 {vr(ST + 4*u)}, v{vXst}, {srd(rWS)}, s{sXS} offen offset:{128*u} sc1")
    stamp(A)
    XL = RAW
    vP = vT + 9; vP2 = vT + 10
    vWt = vT + 11; vWn = vT + 12
    G = ACC0
    WB = RAW + 32
    PK = RAW + 16
    A.I(f"""
    v_and_b32 v{vT+13}, 15, v{vLane}
    v_lshrrev_b32 v{vT+14}, 4, v{vLane}
    v_mul_u32_u24 v{vWt}, 200, v{vT+13}
    v_lshl_add_u32 v{vWt}, v{vT+14}, 3, v{vWt}
    v_add_u32 v{vWt}, {L_W}, v{vWt}
    v_lshrrev_b32 v{vT+13}, 2, v{vLane}
    v_mul_u32_u24 v{vWn}, 200, v{vT+13}
    v_and_b32 v{vT+13}, 3, v{vLane}
    v_lshl_add_u32 v{vWn}, v{vT+13}, 3, v{vWn}
    v_add_u32 v{vWn}, {L_W}, v{vWn}
    v_mov_b32 v{vP}, 0
    v_mov_b32 v{vP2}, 0
    s_mov_b32 s{sC10}, 0x00003f80
    s_mov_b32 s{sC01}, 0x3f800000
    """)
    def xloads(tag):
        for q in range(4):
            A.vm(tag, f"buffer_load_dwordx4 {vr(XL + 4*q)}, v{vXld}, {srd(rWS)}, s{sXL[q]} offen sc1")
    if OPT['pnn']:
        assert 't6' not in A.vmq and 'wdma' not in A.vmq
        tiles = [(t, u) for t in range(7) for u in range(t, 7)]
        def wreads(i):
            t, u = tiles[i]
            A.ds(('w', i), f"ds_read_b64 {vr(WB + 4*(i & 3), 2)}, v{vWt} offset:{u*3200 + t*32}")
            if t < u:
                A.ds(('w', i), f"ds_read_b64_tr_b16 {vr(WB + 4*(i & 3) + 2, 2)}, v{vWn} offset:{t*3200 + u*32}")
        def contract(i):
            t, u = tiles[i]
            g = G + 4 * (i & 3); pk = PK + 2 * (i & 1); wb = WB + 4 * (i & 3)
            r = [f"v_cvt_pk_bf16_f32 v{pk}, v{g}, v{g+1}", f"v_cvt_pk_bf16_f32 v{pk+1}, v{g+2}, v{g+3}",
                 ('wait', i),
                 f"v_dot2_f32_bf16 v{vP}, v{pk}, v{wb}, v{vP}", f"v_dot2_f32_bf16 v{vP2}, v{pk+1}, v{wb+1}, v{vP2}"]
            if t < u:
                r += [f"v_dot2_f32_bf16 v{vP}, v{pk}, v{wb+2}, v{vP}", f"v_dot2_f32_bf16 v{vP2}, v{pk+1}, v{wb+3}, v{vP2}"]
            return r
        pend = []
        for i in range(len(tiles) + 2):
            if i == OPT['pollat']: xloads('xl')
            if i < len(tiles):
                wreads(i)
            if i >= 2: pend = contract(i - 2)
            for ks in range(4):
                if i < len(tiles):
                    t, u = tiles[i]; g = G + 4 * (i & 3)
                    A.I(f"v_mfma_f32_16x16x32_bf16 {vr(g)}, {ar(AE + 16*t + 4*ks)}, {ar(AE + 16*u + 4*ks)}, " + ("0" if ks == 0 else vr(g)))
                for _ in range(2):
                    if pend:
                        x = pend.pop(0)
                        if isinstance(x, tuple):
                            A.wait(ds=[('w', x[1])])
                            x = pend.pop(0)
                        A.I(x)
            assert not pend
    else:
        xloads('xl')
    stamp(A)
    H = RAW + 16
    W2F = RAW + 24
    A.I(f"""
    v_add_f32 v{vP}, v{vP}, v{vP2}
    v_and_b32 v{vT+13}, 3, v{vLane}
    v_cmp_eq_u32 vcc, s{sW}, v{vT+13}
    v_add_f32_dpp v{vP}, v{vP}, v{vP} quad_perm:[1,0,3,2] row_mask:0xf bank_mask:0xf
    v_add_f32_dpp v{vP}, v{vP}, v{vP} quad_perm:[2,3,0,1] row_mask:0xf bank_mask:0xf
    v_cndmask_b32 v{vP}, 0, v{vP}, vcc
    """)
    for d in range(4):
        A.I(f"v_lshlrev_b32 v{W2F + 2*d}, 16, v{vW2v + d}\nv_and_b32 v{W2F + 2*d + 1}, 0xffff0000, v{vW2v + d}")
        A.I(f"v_lshlrev_b32 v{H + 2*d}, 16, v{vB1v + d}\nv_and_b32 v{H + 2*d + 1}, 0xffff0000, v{vB1v + d}")
    M = vT + 13
    A.I(f"s_mov_b32 s{sCNT}, 0x40000")
    A.I("Lpoll:")
    A.wait(vmall=True)
    A.I(f"v_max3_u32 v{M}, v{XL}, v{XL+1}, v{XL+2}")
    for i in range(3, 15, 2):
        A.I(f"v_max3_u32 v{M}, v{M}, v{XL+i}, v{XL+i+1}")
    A.I(f"""
    v_max_u32 v{M}, v{M}, v{XL+15}
    v_cmp_eq_u32 vcc, -1, v{M}
    s_sub_u32 s{sCNT}, s{sCNT}, 1
    s_cbranch_scc1 Lpollok
    s_cbranch_vccz Lpollok
    """)
    xloads('xl2')
    A.I("s_branch Lpoll\nLpollok:")
    A.vmq = []
    stamp(A)
    for q in range(4):
        for d in range(4):
            A.I(f"v_dot2_f32_bf16 v{H + 2*d}, v{XL + 4*q + d}, s{sC10}, v{H + 2*d}")
            A.I(f"v_dot2_f32_bf16 v{H + 2*d + 1}, v{XL + 4*q + d}, s{sC01}, v{H + 2*d + 1}")
    T1 = RAW + 32; T2 = RAW + 40
    A.I(f"s_mov_b32 s{sT0}, 0x3dd2d3e8\ns_mov_b32 s{sT1}, 0x40135761")
    import struct
    f2u = lambda x: struct.unpack('<I', struct.pack('<f', x))[0]
    c1 = 2 * 0.7978845608028654 * 1.4426950408889634; c2 = c1 * 0.044715
    A.L.pop(); A.L.pop()
    A.I(f"v_mov_b32 v{M}, 0x{f2u(c1):08x}")
    for i in range(8): A.I(f"v_mul_f32 v{T1+i}, v{H+i}, v{H+i}")
    for i in range(8): A.I(f"v_fmamk_f32 v{T1+i}, v{T1+i}, 0x{f2u(c2):08x}, v{M}")
    for i in range(8): A.I(f"v_mul_f32 v{T1+i}, v{T1+i}, v{H+i}")
    for i in range(8): A.I(f"v_exp_f32 v{T1+i}, -v{T1+i}")
    for i in range(8): A.I(f"v_mul_f32 v{T2+i}, v{H+i}, v{W2F+i}")
    for i in range(8): A.I(f"v_add_f32 v{T1+i}, 1.0, v{T1+i}")
    for i in range(8): A.I(f"v_rcp_f32 v{T1+i}, v{T1+i}")
    for i in range(8): A.I(f"v_fmac_f32 v{vP}, v{T1+i}, v{T2+i}")
    A.I(f"""
    v_add_f32_dpp v{vP}, v{vP}, v{vP} row_ror:4 row_mask:0xf bank_mask:0xf
    v_add_f32_dpp v{vP}, v{vP}, v{vP} row_ror:8 row_mask:0xf bank_mask:0xf
    v_mov_b32 v{vP2}, v{vP}
    v_permlane16_swap_b32 v{vP}, v{vP2}
    v_add_f32 v{vP}, v{vP}, v{vP2}
    v_mov_b32 v{vP2}, v{vP}
    v_permlane32_swap_b32 v{vP}, v{vP2}
    v_add_f32 v{vP}, v{vP}, v{vP2}
    v_and_b32 v{M}, 3, v{vLane}
    v_lshlrev_b32 v{M}, 4, v{M}
    s_lshl_b32 s{sT0}, s{sW}, 2
    s_add_u32 s{sT0}, s{sT0}, {L_SCR}
    v_add_u32 v{M+1}, s{sT0}, v{M}
    """)
    A.ds('fin', f"ds_write_b32 v{M+1}, v{vP}")
    A.I(f"v_add_u32 v{M}, {L_SCR}, v{M}")
    A.wait(dsall=True)
    A.I(f"""
    s_barrier
    s_cmp_lg_u32 s{sW}, 0
    s_cbranch_scc1 Ldone
    """)
    A.ds('fin', f"ds_read_b128 {vr(T1)}, v{M}")
    A.I(f"""
    v_lshlrev_b32 v{vB2v}, 16, v{vB2v}
    s_lshr_b32 s{sT0}, s{sXL[0]}, 11
    v_lshlrev_b32 v{M}, 1, v{vLane}
    v_add_u32 v{M}, s{sT0}, v{M}
    """)
    A.wait(dsall=True)
    A.I(f"""
    v_add_f32 v{T1}, v{T1}, v{T1+1}
    v_add_f32 v{T1+2}, v{T1+2}, v{T1+3}
    v_add_f32 v{T1}, v{T1}, v{vB2v}
    v_add_f32 v{T1}, v{T1}, v{T1+2}
    v_cvt_pk_bf16_f32 v{T1}, v{T1}, v{T1}
    s_mov_b64 exec, 15
    global_store_short v{M}, v{T1}, {sp(sOUTP)}
    s_mov_b64 exec, -1
    Ldone:
    """)
    if OPT['stamps']:
        stamp(A)
        A.I(f"""
        s_waitcnt lgkmcnt(0)
        s_mov_b64 exec, 1
        s_lshl_b32 s{sT0}, s2, 2
        s_add_u32 s{sT0}, s{sT0}, s{sW}
        s_mul_i32 s{sT0}, s{sT0}, {8*nst[0]}
        s_add_u32 s{sT0}, s{sT0}, {8<<20}
        v_mov_b32 v{M}, s{sT0}
        """)
        for i in range(nst[0]):
            A.I(f"v_mov_b32 v{T1}, s{sST+2*i}\nv_mov_b32 v{T1+1}, s{sST+2*i+1}\nglobal_store_dwordx2 v{M}, {vr(T1,2)}, {sp(sWSP)} offset:{8*i}\ns_nop 1")
    A.I("Lend:\ns_endpgm")

def build(WT):
    nst[0] = 0
    A = Asm()
    segs = {}
    def seg(name, f, *a):
        st = len(A.L); f(A, *a); segs[name] = A.L[st:]
    seg('pro', prologue)
    for m in range(6):
        seg(f'body{m}', body, m, WT)
        seg(f'side{m}', side, m)
    seg('tail', tail)
    return segs

WT = W(); build(WT); WT.mode = 'emit'; segs = build(WT)
b0 = [i.text for i in segs['body0']]
for m in range(1, 6): assert [i.text for i in segs[f'body{m}']] == b0, m
pro, _ = check(segs['pro'], pad=True)
bodyI = segs['body0']
SIDE_BYTES = 128
jump = [Ins(f"s_setpc_b64 {sp(sSJ)}")]
_, v = check(pro + bodyI, label='pro+body'); assert not v, v
sides = []
for m in range(6):
    s = [Ins(f"s_add_u32 s{sSJ}, s{sSJ}, Lside{m+1}-Lside{m}"), Ins(f"s_addc_u32 s{sSJ+1}, s{sSJ+1}, 0")] if m < 5 else []
    s = s + segs[f'side{m}']
    full, _ = check(bodyI + jump + s, pad=True)
    s = full[len(bodyI) + 1:]
    assert [i.text for i in full[:len(bodyI)]] == b0
    if m < 5:
        s = s + [Ins("s_branch Lloop")]
        _, v = check(s + bodyI, label=f'side{m}+body'); assert not v, v
    sides.append(s)
full, _ = check(bodyI + jump + sides[5] + segs['tail'], pad=True)
tailI = full[len(bodyI) + 1 + len(sides[5]):]
def txt(L): return ''.join(('' if i.cls == 'label' else '  ') + i.text + '\n' for i in L)
out = f"""; deep_cross_pnn: split-K MFMA GEMM with LDS-resident table quarter + Gram (PNN) tail
; @launch grid=(256,1,1) block=(256,1,1) lds={L_TOTAL}
.amdgcn_target "amdgcn-amd-amdhsa--gfx950"
.text
.globl {KN}
.p2align 8
.type {KN},@function
{KN}:
"""
out += txt(pro) + "Lloop:\n" + txt(bodyI + jump)
for m in range(6):
    out += f"Lside{m}:\n" + txt(sides[m])
out += txt(tailI)
out += footer(512, 256, 102)
open(sys.argv[1], 'w').write(out)
print("waits:", WT.sites)
print("body instrs", len(bodyI), "pro", len(pro), "tail", len(tailI), "stamps", nst[0])
```

```python
import sys, struct
from asmlib import *
from common import KN, footer

OPT = dict(stamps=0, pnn=1, pollat=24, itst=0, touch=1, tlead=2, ctouch=1)
for a in sys.argv[2:]:
    k, v = a.split('='); OPT[k] = int(v)

L_TAB = 0
L_IDX = 66560
L_W = 98304
L_E = 122880
L_SCR = 139264
L_TOTAL = 139520
sIDXP, sTABP, sWPP, sW1P, sB1P, sW2P, sB2P, sOUTP, sDBGP, sWSP = 4, 6, 8, 10, 12, 14, 16, 18, 20, 22
rIDX, rTAB, rWP, rW1, rWS = 24, 28, 32, 36, 40
sW, sX, sJ, sQ, sNT, sMT = 44, 45, 46, 47, 48, 49
sB = [50, 51, 52, 53]
sTCH = 54; sIE = 55
sSJ = 56
sEM0 = 58
sT0, sT1, sT2, sT3 = 59, 60, 61, 62
sPO = 63
sXL = [64, 65, 66, 67]
sXS = 68; sCNT = 69
sC10, sC01 = 54, 55
sST = 70
def srd(r): return f"s[{r}:{r+3}]"
def sp(r): return f"s[{r}:{r+1}]"
vLane = 1; vB0 = 2; vB1 = 3; vSel = 4; vB0p = 5; vB1p = 6; vG0 = 7; vG1 = 8
vTch = 9; vDum = 10
vCpre = [11, 12, 13, 14]; vEr = [15, 16, 17, 18]; vEoff = 19
vIE = 20
vDma = [24, 25, 26, 27]
vXld = 28; vCnt = 30; vZero = 31; vLc = 29
ACC0 = 32; RAW = 64; BF = 128; EMB = 160; TMP = 192; IDX = 196; ADDR = 204
vIA = [212, 213, 214, 215]
vPois = 216
vT = 228
AE = 96
def vr(b, n=4): return f"v[{b}:{b+n-1}]"
def ar(b, n=4): return f"a[{b}:{b+n-1}]"
def acc(T, d): return vr(ACC0 + 16*T + 4*d) if T < 2 else ar((T - 2)*16 + 4*d)
def raw(slot, t, d=None):
    b = RAW + 16 * slot + 4 * t
    return vr(b) if d is None else f"v{b+d}"
def bf(buf, d, t=None):
    b = BF + 16 * buf + 4 * d
    return vr(b) if t is None else f"v{b+t}"
f2u = lambda x: struct.unpack('<I', struct.pack('<f', x))[0]
nst = [0]
def stamp(A):
    if OPT['stamps']:
        A.I(("s_memrealtime" if OPT['stamps'] == 2 else "s_memtime") + f" {sp(sST + 2 * nst[0])}")
        nst[0] += 1

def bload(A, n, t, sreg):
    lo, hi = (vB0p, vB1p) if n % 4 == 0 else (vB0, vB1)
    A.vm(('raw', n, t), f"buffer_load_dwordx4 {raw(n & 3, t)}, v{lo if t < 2 else hi}, {srd(rW1)}, s{sreg} offen" + (" offset:2048" if t & 1 else ""))
def xf_dpp(n, t, d): return f"v_mov_b32_dpp v{TMP+d}, {raw(n & 3, t, d)} row_ror:8 row_mask:0xf bank_mask:0xf"
def xf_perm(n, t, d): return f"v_perm_b32 {bf(n & 1, d, t)}, v{TMP+d}, {raw(n & 3, t, d)}, v{vSel}"
def embread(A, n, T):
    A.ds(('emb', n, T), f"ds_read_b128 {vr(EMB + 4*T)}, v{ADDR + T}" + (" offset:32" if n & 1 else ""))
def addr_op(T, word):
    return f"v_add_u32_sdwa v{ADDR+T}, v{IDX+T}, v{vG1 if word else vG0} dst_sel:DWORD dst_unused:UNUSED_PAD src0_sel:WORD_{word} src1_sel:DWORD"
def idxread(A, m, T):
    A.ds(('idx', m, T), f"ds_read_b32 v{IDX+T}, v{vIA[T >> 1]}" + (" offset:3200" if T & 1 else ""))
def mfma(n, T, d):
    return f"v_mfma_f32_16x16x32_bf16 {acc(T, d)}, {bf(n & 1, d)}, {vr(EMB + 4*T)}, {acc(T, d)}"
def touch(A):
    if OPT['touch']:
        A.vm('tch', f"buffer_load_dword v{vDum}, v{vTch}, {srd(rW1)}, s{sTCH} offen")
def ieload(A, m):
    A.vm(('ie', m), f"buffer_load_dwordx4 {vr(vIE)}, v{vEoff}, {srd(rIDX)}, s{sIE} offen")

class W:
    def __init__(self): self.sites = {}; self.mode = 'rec'
    def __call__(self, A, site, **kw):
        if self.mode == 'rec':
            nv, nd = A.wait(**kw)
            o = self.sites.get(site, (None, None))
            mn = lambda a, b: b if a is None else (a if b is None else min(a, b))
            self.sites[site] = (mn(o[0], nv), mn(o[1], nd))
        else:
            A.wait(force=self.sites[site], **kw)

FSTEP = 16 * 131072
def body(A, m, WT):
    for e in range(4):
        n = 4 * m + e
        for g in range(32):
            T, d = g >> 2, g & 3
            t, ph = g >> 3, g & 7
            A.I(mfma(n, T, d))
            dma = {(0, 1): 0, (0, 2): 1, (0, 3): 2, (1, 0): 3}.get((e, t))
            if ph == 0:
                A.I(xf_dpp(n + 1, t, 0)); A.I(xf_dpp(n + 1, t, 1))
            elif ph == 1:
                A.I(xf_dpp(n + 1, t, 2)); A.I(xf_dpp(n + 1, t, 3))
            elif ph == 2:
                A.I(xf_perm(n + 1, t, 0)); A.I(xf_perm(n + 1, t, 1))
            elif ph == 3:
                embread(A, n + 1, T); A.I(xf_perm(n + 1, t, 2))
            elif ph == 4:
                A.I(xf_perm(n + 1, t, 3))
                A.I(addr_op(t + 4 * (e & 1), 1 if e < 2 else 0))
            elif ph == 5:
                bload(A, n + 5, t, sB[e])
                if dma is not None:
                    A.I(f"s_mov_b32 m0, s{sEM0}" if dma == 0 else "s_add_u32 m0, m0, 1024")
                elif t == 3: A.I(f"s_add_u32 s{sB[e]}, s{sB[e]}, {FSTEP}")
            elif ph == 6:
                if dma is not None:
                    A.vm(('dma', m, dma), f"buffer_load_dwordx4 v{vDma[dma]}, {srd(rTAB)}, 0 offen lds")
                    if t == 3: A.I(f"s_add_u32 s{sB[e]}, s{sB[e]}, {FSTEP}")
                if e == 0 and t == 0:
                    A.vm(('pois', m), f"buffer_store_dwordx4 {vr(vPois)}, v{vXld}, {srd(rWS)}, s{sPO} offen sc1")
                if e in (1, 2): idxread(A, m + 1, t + 4 * (e - 1))
                if e == 1 and t in (1, 3): A.I(f"v_add_u32 v{vIA[t >> 1]}, 32, v{vIA[t >> 1]}")
                if e == 2 and t in (1, 3): A.I(f"v_add_u32 v{vIA[2 + (t >> 1)]}, 32, v{vIA[2 + (t >> 1)]}")
                if e == 1 and t == 2: A.I(f"s_add_u32 s{sPO}, s{sPO}, 4096")
                if e == 2 and t == 0: A.I(f"s_add_u32 s{sTCH}, s{sTCH}, {FSTEP}")
                if e == 3:
                    if t < 2:
                        for i in (2 * t, 2 * t + 1):
                            A.I(f"v_lshl_add_u32 v{vDma[i]}, v{vIE+i}, 8, v{vCpre[i]}")
                    if t == 2:
                        ieload(A, m + 2); A.I(f"s_add_u32 s{sIE}, s{sIE}, 64")
                    if t == 3: touch(A)
            else:
                embread(A, n + 1, T)
                dst = []; vmt = []
                if t < 3:
                    dst += [('emb', n, 2*t+2), ('emb', n, 2*t+3)]; vmt += [('raw', n + 1, t + 1)]
                    if e >= 2: dst += [('idx', m + 1, t + 1 + 4 * (e - 2))]
                else:
                    dst += [('emb', n + 1, 0), ('emb', n + 1, 1)]; vmt += [('raw', n + 2, 0)]
                    if e in (1, 2): dst += [('idx', m + 1, 4 * (e - 1))]
                if e == 0 and t == 0: dst += [('eread', m - 1)]
                if e == 2 and t == 3: vmt += [('ie', m + 1)]
                if e == 3 and t == 3: vmt += [('dma', m, 3)]
                WT(A, ('g', e, t), ds=dst, vm=vmt)

def side(A, m):
    if OPT['itst'] and m < 5: stamp(A)
    for ks in range(4):
        A.ds(('eread', m), f"ds_read_b128 {ar(AE + 16*m + 4*ks)}, v{vEr[ks]}")
    if m == 3:
        A.I(f"s_mul_i32 s{sT0}, s{sW}, {3*131072}")
        A.I(f"s_sub_u32 s{sB[3]}, s{sB[3]}, s{sT0}")
        A.I(f"v_mov_b32 v{vB0p}, v{vT+3}")
        A.I(f"v_add_u32 v{vB1p}, 4096, v{vT+3}")
        A.I(f"s_mov_b32 s{sPO}, 0x7ff00000")
        assert not any(isinstance(x, tuple) and x[0] == 'pois' for x in A.vmq), A.vmq
        A.I("s_mov_b64 exec, 1")
        A.ds('lc', f"ds_add_rtn_u32 v{vLc}, v{vT+4}, v{vT+1}")
        A.I("s_mov_b64 exec, -1")
    if m == 4:
        assert 'lc' not in A.dsq
        A.I(f"v_readfirstlane_b32 s{sT0}, v{vLc}")
        for i in range(4):
            A.I(f"v_sub_u32 v{vIA[i]}, v{vIA[i]}, v{vT+5}")
        A.I(f"v_and_b32 v{vG0}, 48, v{vLane}")
        A.I(f"""
        s_cmp_lg_u32 s{sT0}, 3
        s_cbranch_scc1 Lnoatom
        s_mov_b64 exec, 1
        global_atomic_add v{vT}, v{vT+1}, {sp(sDBGP)} sc1
        s_mov_b64 exec, -1
        Lnoatom:
        """)

def prologue(A):
    A.I(f"""
    s_cmp_ge_u32 s2, 256
    s_cbranch_scc1 Lend
    """)
    stamp(A)
    A.I(f"""
    s_load_dwordx16 s[4:19], s[0:1], 0
    s_load_dwordx4 s[20:23], s[0:1], 64
    s_getpc_b64 {sp(sSJ)}
    Lpcref:
    """)
    if OPT['ctouch']:
        A.I(f"""
        v_lshlrev_b32 v{vT}, 7, v0
        v_min_u32 v{vT}, Lend-Lpcref, v{vT}
        """)
        A.vm('tch', f"global_load_dword v{vDum}, v{vT}, {sp(sSJ)}")
    A.I(f"""
    v_and_b32 v{vLane}, 63, v0
    v_lshrrev_b32 v{vT}, 6, v0
    s_and_b32 s{sX}, s2, 7
    v_readfirstlane_b32 s{sW}, v{vT}
    s_lshr_b32 s{sJ}, s2, 3
    s_lshr_b32 s{sQ}, s{sX}, 1
    s_and_b32 s{sT2}, s{sX}, 1
    s_lshl_b32 s{sNT}, s{sT2}, 2
    s_lshr_b32 s{sT0}, s{sJ}, 3
    s_add_u32 s{sNT}, s{sNT}, s{sT0}
    s_and_b32 s{sMT}, s{sJ}, 7
    s_add_u32 s{sSJ}, s{sSJ}, Lside0-Lpcref
    s_addc_u32 s{sSJ+1}, s{sSJ+1}, 0
    """)
    A.I(f"""
    v_bfe_u32 v{vT}, v{vLane}, 4, 1
    v_bfe_u32 v{vT+1}, v{vLane}, 3, 1
    v_lshl_add_u32 v{vT}, v{vT}, 3, v{vT+1}
    v_and_b32 v{vT+2}, 7, v{vLane}
    v_lshlrev_b32 v{vT+2}, 4, v{vT+2}
    v_lshl_add_u32 v{vT}, v{vT}, 10, v{vT+2}
    v_lshrrev_b32 v{vT+2}, 5, v{vLane}
    v_lshl_add_u32 v{vB0}, v{vT+2}, 18, v{vT}
    v_lshl_add_u32 v{vT+3}, v{vT+2}, 14, v{vT}
    v_add_u32 v{vB1}, 4096, v{vB0}
    v_mov_b32 v{vB0p}, v{vB0}
    v_mov_b32 v{vB1p}, v{vB1}
    v_mov_b32 v{vSel}, 0x05040100
    v_mov_b32 v{vT+6}, 0x03020706
    v_cmp_eq_u32 vcc, 1, v{vT+1}
    s_lshl_b32 s{sT0}, s{sQ}, 15
    s_lshl_b32 s{sT1}, s{sNT}, 7
    v_cndmask_b32 v{vSel}, v{vSel}, v{vT+6}, vcc
    s_lshl_b32 s{sTCH}, s{sT2}, 9
    s_add_u32 s{sTCH}, s{sTCH}, s{sT0}
    s_add_u32 s{sT0}, s{sT0}, s{sT1}
    s_lshl_b32 s{sT1}, s{sW}, 19
    s_add_u32 s{sB[3]}, s{sT0}, s{sT1}
    s_add_u32 s{sB[0]}, s{sB[3]}, 16384
    s_add_u32 s{sB[1]}, s{sB[3]}, 131072
    s_add_u32 s{sB[2]}, s{sB[3]}, {131072 + 16384}
    """)
    A.I(f"""
    s_lshl_b32 s{sT0}, s{sJ}, 2
    s_add_u32 s{sT0}, s{sT0}, s{sW}
    s_lshr_b32 s{sT1}, s{sT0}, 3
    s_lshl_b32 s{sT1}, s{sT1}, 17
    s_and_b32 s{sT3}, s{sT0}, 7
    s_lshl_b32 s{sT3}, s{sT3}, 12
    s_add_u32 s{sT1}, s{sT1}, s{sT3}
    s_add_u32 s{sTCH}, s{sTCH}, s{sT1}
    v_lshrrev_b32 v{vT}, 4, v{vLane}
    v_bfe_u32 v{vT+1}, v{vLane}, 2, 2
    v_lshlrev_b32 v{vT+1}, 7, v{vT+1}
    v_lshl_add_u32 v{vTch}, v{vT}, 10, v{vT+1}
    """)
    A.I(f"""
    v_lshrrev_b32 v{vT+10}, 2, v{vLane}
    v_lshlrev_b32 v{vT+8}, 8, v{vT+10}
    v_lshlrev_b32 v{vT+10}, 7, v{vT+10}
    v_and_b32 v{vT+6}, 3, v{vLane}
    v_lshl_add_u32 v{vT+8}, v{vT+6}, 4, v{vT+8}
    s_lshl_b32 s{sT1}, s{sQ}, 6
    v_add_u32 v{vT+8}, s{sT1}, v{vT+8}
    v_lshlrev_b32 v{vXld}, 4, v0
    v_lshrrev_b32 v{vT+11}, 1, v{vLane}
    v_min_u32 v{vT+11}, 24, v{vT+11}
    v_lshlrev_b32 v{vT+11}, 7, v{vT+11}
    s_lshl_b32 s{sT1}, s{sT0}, 11
    s_mul_i32 s{sT2}, s{sT0}, 3200
    s_mul_i32 s{sT3}, s{sMT}, 51200
    s_waitcnt lgkmcnt(0)
    """)
    def mksrd(r, p, size):
        A.I(f"s_mov_b32 s{r}, s{p}\ns_mov_b32 s{r+1}, s{p+1}\ns_mov_b32 s{r+2}, {size}\ns_mov_b32 s{r+3}, 0x20000")
    mksrd(rIDX, sIDXP, 409600)
    A.vm('tch', f"buffer_load_dword v{vDum}, v{vT+11}, {srd(rIDX)}, s{sT2} offen")
    mksrd(rTAB, sTABP, 256000)
    A.vm('tch', f"buffer_load_dword v{vDum}, v{vT+10}, {srd(rTAB)}, s{sT1} offen")
    mksrd(rW1, sW1P, 13107200)
    touch(A)
    A.I(f"s_add_u32 s{sTCH}, s{sTCH}, {FSTEP}")
    stamp(A)
    IC = BF
    for k in range(13):
        A.vm(('ic', k), f"buffer_load_dwordx4 {vr(IC + 4*k)}, v{vXld}, {srd(rIDX)}, s{sT3} offen")
        if k < 12: A.I(f"s_add_u32 s{sT3}, s{sT3}, 4096")
    for t in range(4): bload(A, 0, t, sB[3])
    for t in range(4): bload(A, 1, t, sB[0])
    mksrd(rWP, sWPP, 20000)
    mksrd(rWS, sWSP, 4194304)
    A.I(f"""
    v_mov_b32 v{vZero}, 0
    v_mov_b32 v{TMP}, 0
    v_mov_b32 v{TMP+1}, 0
    v_mov_b32 v{TMP+2}, 0
    v_mov_b32 v{TMP+3}, 0
    v_lshlrev_b32 v{vT+12}, 3, v0
    v_add_u32 v{vT+12}, {L_IDX}, v{vT+12}
    v_mov_b32 v{vT+13}, 0x00410041
    v_mov_b32 v{vT+14}, 0x05040100
    """)
    for i in range(2): A.I(f"v_mfma_f32_32x32x16_bf16 {vr(ACC0 + 16*i, 16)}, {vr(TMP)}, {vr(TMP)}, 0")
    for i in range(6): A.I(f"v_mfma_f32_32x32x16_bf16 {ar(16*i, 16)}, {vr(TMP)}, {vr(TMP)}, 0")
    A.I(f"""
    v_and_b32 v{vT+1}, 15, v{vLane}
    v_mul_u32_u24 v{vT}, 200, v{vT+1}
    v_lshrrev_b32 v{vT+2}, 5, v{vLane}
    v_lshlrev_b32 v{vT+5}, 2, v{vT+2}
    v_add_u32 v{vT}, v{vT}, v{vT+5}
    s_lshl_b32 s{sT1}, s{sW}, 3
    s_add_u32 s{sT1}, s{sT1}, {L_IDX}
    s_mul_i32 s{sT2}, s{sW}, 6
    v_add_u32 v{vT+5}, s{sT2}, v{vT+5}
    v_and_b32 v{vG0}, 16, v{vLane}
    v_and_b32 v{vG1}, 16, v{vLane}
    """)
    for i in range(4):
        A.I(f"""
        s_add_u32 s{sT2}, s{sW}, {i}
        s_and_b32 s{sT2}, s{sT2}, 3
        s_mul_i32 s{sT2}, s{sT2}, 6400
        s_add_u32 s{sT2}, s{sT2}, s{sT1}
        v_add_u32 v{vIA[i]}, s{sT2}, v{vT}
        """)
    A.I(f"""
    s_lshl_b32 s{sT1}, s{sNT}, 2
    s_add_u32 s{sT1}, s{sT1}, s{sQ}
    s_lshl_b32 s{sT2}, s{sMT}, 5
    s_add_u32 s{sT2}, s{sT2}, s{sT1}
    s_lshl_b32 s{sXL[0]}, s{sT2}, 14
    s_mov_b32 s{sPO}, s{sXL[0]}
    s_lshl_b32 s{sT2}, s{sT2}, 2
    s_add_u32 s{sT2}, s{sT2}, s{sW}
    s_mul_i32 s{sIE}, s{sT2}, 400
    v_and_b32 v{vEoff}, 48, v{vLane}
    """)
    ieload(A, 0)
    A.I(f"""
    s_add_u32 s{sIE}, s{sIE}, 64
    s_lshl_b32 s{sEM0}, s{sW}, 12
    s_add_u32 s{sEM0}, s{sEM0}, {L_E}
    v_lshrrev_b32 v{vT+2}, 2, v{vEoff}
    v_xor_b32 v{vT+2}, v{vT+2}, v{vT+1}
    v_lshlrev_b32 v{vCpre[0]}, 4, v{vT+2}
    v_xor_b32 v{vCpre[1]}, 16, v{vCpre[0]}
    v_xor_b32 v{vCpre[2]}, 32, v{vCpre[0]}
    v_xor_b32 v{vCpre[3]}, 48, v{vCpre[0]}
    v_lshrrev_b32 v{vT+2}, 4, v{vLane}
    v_xor_b32 v{vT+2}, v{vT+2}, v{vT+1}
    v_lshlrev_b32 v{vT+2}, 4, v{vT+2}
    v_and_b32 v{vT+6}, 3, v{vLane}
    v_lshl_add_u32 v{vT+2}, v{vT+6}, 10, v{vT+2}
    v_lshrrev_b32 v{vT+6}, 2, v{vT+1}
    v_lshl_add_u32 v{vT+2}, v{vT+6}, 8, v{vT+2}
    v_add_u32 v{vEr[0]}, s{sEM0}, v{vT+2}
    v_xor_b32 v{vEr[1]}, 64, v{vEr[0]}
    v_xor_b32 v{vEr[2]}, 0x80, v{vEr[0]}
    v_xor_b32 v{vEr[3]}, 0xc0, v{vEr[0]}
    v_mov_b32 v{vPois}, -1
    v_mov_b32 v{vPois+1}, -1
    v_mov_b32 v{vPois+2}, -1
    v_mov_b32 v{vPois+3}, -1
    s_lshl_b32 s{sT1}, s{sMT}, 5
    s_lshr_b32 s{sT2}, s{sNT}, 1
    s_lshl_b32 s{sT2}, s{sT2}, 3
    s_add_u32 s{sT2}, s{sT2}, s{sT1}
    v_mov_b32 v{vT}, s{sT2}
    v_mov_b32 v{vT+1}, 1
    s_lshl_b32 s{sT2}, s{sW}, 3
    s_add_u32 s{sT2}, s{sT2}, s{sT1}
    v_mov_b32 v{vT+2}, s{sT2}
    v_mov_b32 v{vT+4}, {L_SCR + 128}
    """)
    A.ds('lc0', f"ds_write_b32 v{vT+4}, v{vZero}")
    A.I(f"""
    s_lshl_b32 s{sT1}, s{sJ}, 1
    s_add_u32 s{sT1}, s{sT1}, s{sW}
    """)
    def conv(k):
        A.wait(vm=[('ic', k)])
        b = IC + 4 * k
        A.I(f"""
        v_perm_b32 v{b}, v{b+1}, v{b}, v{vT+14}
        v_perm_b32 v{b+1}, v{b+3}, v{b+2}, v{vT+14}
        v_pk_mul_lo_u16 v{b}, v{b}, v{vT+13}
        v_pk_mul_lo_u16 v{b+1}, v{b+1}, v{vT+13}
        v_and_b32 v{b}, 0xfff0fff0, v{b}
        v_and_b32 v{b+1}, 0xfff0fff0, v{b+1}
        """)
        A.ds('icw', f"ds_write_b64 v{vT+12}, {vr(b, 2)} offset:{2048*k}")
    for i in range(16):
        A.I(f"""
        s_and_b32 s{sT1}, s{sT1}, 63
        s_mul_i32 m0, s{sT1}, 1040
        s_lshl_b32 s{sT3}, s{sT1}, 12
        """)
        A.vm('fill', f"buffer_load_dwordx4 v{vT+8}, {srd(rTAB)}, s{sT3} offen lds")
        if i < 15: A.I(f"s_add_u32 s{sT1}, s{sT1}, 4")
        if i >= 3: conv(i - 3)
    for _ in range(OPT['tlead'] - 1):
        touch(A); A.I(f"s_add_u32 s{sTCH}, s{sTCH}, {FSTEP}")
    touch(A)
    stamp(A)
    A.wait(ds=['icw'], vm=[('raw', 0, 3), ('ie', 0)])
    for t in range(4):
        for d in range(4): A.I(xf_dpp(0, t, d))
        for d in range(4): A.I(xf_perm(0, t, d))
    for i in range(4):
        A.I(f"v_lshl_add_u32 v{vDma[i]}, v{vIE+i}, 8, v{vCpre[i]}")
    ieload(A, 1); A.I(f"s_add_u32 s{sIE}, s{sIE}, 64")
    A.I(f"s_add_u32 s{sB[3]}, s{sB[3]}, {FSTEP}\ns_add_u32 s{sB[0]}, s{sB[0]}, {FSTEP}")
    A.wait(vm=['fill'])
    A.I("s_barrier")
    stamp(A)
    for T in range(8): idxread(A, 0, T)
    for t in range(4): bload(A, 2, t, sB[1])
    for T in range(8):
        if T % 4 == 0: A.wait(ds=[('idx', 0, T + 3)])
        A.I(addr_op(T, 0))
        embread(A, 0, T)
    for i in range(4): A.I(f"v_add_u32 v{vIA[i]}, 32, v{vIA[i]}")
    for t in range(4): bload(A, 3, t, sB[2])
    for t in range(4): bload(A, 4, t, sB[3])
    A.I(f"s_add_u32 s{sB[1]}, s{sB[1]}, {FSTEP}\ns_add_u32 s{sB[2]}, s{sB[2]}, {FSTEP}\ns_add_u32 s{sB[3]}, s{sB[3]}, {FSTEP}")
    A.I(f"s_mul_i32 s{sT1}, s{sW}, 6144\nv_lshlrev_b32 v{vT+9}, 4, v{vLane}")
    for i in range(6):
        A.I(f"s_add_u32 m0, s{sT1}, {L_W + 1024*i}\ns_add_u32 s{sT3}, s{sT1}, {1024*i}")
        A.vm('wdma', f"buffer_load_dwordx4 v{vT+9}, {srd(rWP)}, s{sT3} offen lds")
    A.wait(ds=[('emb', 0, 0), ('emb', 0, 1)], vm=[('raw', 1, 0)])
    stamp(A)

def tail(A):
    n = 24
    stamp(A)
    vImg = [vT + 8, vT + 9, vT + 10]; vImgR = vT + 7
    vB1v = IDX
    vW2v = ADDR
    vB2v = vT + 11; vT6 = vT + 12
    A.vm('cnt', f"global_load_dword v{vCnt}, v{vT+2}, {sp(sDBGP)} sc1")
    A.I(f"""
    v_and_b32 v{vT+13}, 3, v{vLane}
    v_lshlrev_b32 v{vT+13}, 2, v{vT+13}
    s_sub_u32 s{sIE}, s{sIE}, 128
    """)
    A.vm('t6i', f"buffer_load_dword v{vT6}, v{vT+13}, {srd(rIDX)}, s{sIE} offen")
    A.I(f"v_lshlrev_b32 v{vImgR}, 4, v{vLane}")
    for tau in (1, 2, 3):
        A.I(f"""
        s_add_u32 s{sT0}, s{sW}, {tau}
        s_and_b32 s{sT0}, s{sT0}, 3
        s_mul_i32 s{sT0}, s{sT0}, 24576
        s_add_u32 s{sT0}, s{sT0}, {(tau-1)*8192}
        v_add_u32 v{vImg[tau-1]}, s{sT0}, v{vImgR}
        """)
    A.I(f"s_mul_i32 s{sT0}, s{sW}, 24576\nv_add_u32 v{vImgR}, s{sT0}, v{vImgR}")
    A.wait(dsall=True)
    A.I("s_barrier")
    vXst = vT + 14
    extra = f"""
    v_lshrrev_b32 v{vT+13}, 5, v{vLane}
    v_lshlrev_b32 v{vT+13}, 7, v{vT+13}
    v_bfe_u32 v{vT+15}, v{vLane}, 2, 1
    v_lshl_add_u32 v{vT+13}, v{vT+15}, 6, v{vT+13}
    v_bfe_u32 v{vT+15}, v{vLane}, 4, 1
    v_lshl_add_u32 v{vT+13}, v{vT+15}, 5, v{vT+13}
    s_lshl_b32 s{sT1}, s{sW}, 8
    v_add_u32 v{vT+13}, s{sT1}, v{vT+13}
    VM global_load_dwordx4 {vr(vB1v)}, v{vT+13}, {sp(sB1P)}
    VM global_load_dwordx4 {vr(vB1v+4)}, v{vT+13}, {sp(sB1P)} offset:16
    VM global_load_dwordx4 {vr(vW2v)}, v{vT+13}, {sp(sW2P)}
    VM global_load_dwordx4 {vr(vW2v+4)}, v{vT+13}, {sp(sW2P)} offset:16
    VM global_load_ushort v{vB2v}, v{vZero}, {sp(sB2P)}
    v_bfe_u32 v{vXst}, v{vLane}, 2, 2
    v_lshlrev_b32 v{vXst}, 14, v{vXst}
    v_lshrrev_b32 v{vT+15}, 4, v{vLane}
    v_lshl_add_u32 v{vXst}, v{vT+15}, 6, v{vXst}
    v_and_b32 v{vT+15}, 3, v{vLane}
    v_lshl_add_u32 v{vXst}, v{vT+15}, 4, v{vXst}
    s_lshl_b32 s{sXS}, s{sMT}, 2
    s_add_u32 s{sXS}, s{sXS}, s{sW}
    s_lshl_b32 s{sXS}, s{sXS}, 17
    s_lshl_b32 s{sT0}, s{sQ}, 12
    s_add_u32 s{sXS}, s{sXS}, s{sT0}
    s_lshl_b32 s{sT0}, s{sNT}, 9
    s_add_u32 s{sXS}, s{sXS}, s{sT0}
    s_add_u32 s{sT1}, s{sXS}, 65536
    s_add_u32 s{sXL[1]}, s{sXL[0]}, 4096
    s_add_u32 s{sXL[2]}, s{sXL[0]}, 8192
    s_add_u32 s{sXL[3]}, s{sXL[0]}, 12288
    """.strip().split('\n')
    extra = [x.strip() for x in extra]
    def emit_extra(k):
        for _ in range(k):
            if extra:
                x = extra.pop(0)
                if x.startswith('VM '): A.vm('misc', x[3:])
                else: A.I(x)
    pend = []; ready = []
    seq = [(T, d) for T in (2, 3, 4, 5, 6, 7, 0, 1) for d in range(4)]
    for i, (T, d) in enumerate(seq):
        A.I(mfma(n, T, d))
        if T >= 2: pend.append((i, f"ds_write_b128 v{vImg[(T-2) >> 1]}, {acc(T, d)} offset:{1024*(4*(T&1) + d)}"))
        if pend and pend[0][0] <= i - 3:
            A.ds('imgw', pend.pop(0)[1]); emit_extra(1)
        else: emit_extra(2)
    while pend: A.ds('imgw', pend.pop(0)[1])
    emit_extra(99)
    A.wait(vm=['t6i', 'cnt'])
    A.I(f"""
    v_lshl_add_u32 v{vT6}, v{vT6}, 8, v{vEoff}
    v_and_b32 v{vT+13}, 12, v{vLane}
    v_cmp_ne_u32 vcc, 0, v{vT+13}
    v_mov_b32 v{vT+15}, 0x7fff0000
    s_mov_b32 s{sCNT}, 0x10000
    v_cndmask_b32 v{vT6}, v{vT6}, v{vT+15}, vcc
    """)
    for ks in range(4):
        A.vm('t6', f"buffer_load_dwordx4 {ar(AE + 96 + 4*ks)}, v{vT6}, {srd(rTAB)}, 0 offen offset:{64*ks}")
    A.I(f"""
    Lchk:
    v_readfirstlane_b32 s{sT0}, v{vCnt}
    s_cmp_ge_u32 s{sT0}, 8
    s_cbranch_scc1 Lchkok
    global_load_dword v{vCnt}, v{vT+2}, {sp(sDBGP)} sc1
    s_sub_u32 s{sCNT}, s{sCNT}, 1
    s_waitcnt vmcnt(0)
    s_cbranch_scc0 Lchk
    Lchkok:
    """)
    assert not any(isinstance(x, tuple) and x[0] == 'raw' for x in A.vmq)
    A.wait(dsall=True)
    A.I("s_barrier")
    stamp(A)
    IMG = RAW
    order = [(sg, i2) for h in range(2) for sg in range(3) for i2 in range(4*h, 4*h + 4)]
    for sg, i2 in order:
        A.ds(('imgr', sg, i2), f"ds_read_b128 {vr(IMG + 32*sg + 4*i2)}, v{vImgR} offset:{8192*sg + 1024*i2}")
    ST = EMB
    for k, (sg, i2) in enumerate(order):
        if k % 2 == 0: A.wait(ds=[('imgr',) + order[k + 1]])
        for r in range(4):
            A.I(f"v_add_f32 v{ACC0 + 4*i2 + r}, v{ACC0 + 4*i2 + r}, v{IMG + 32*sg + 4*i2 + r}")
        if k % 12 == 11:
            T = k // 12
            for kap in range(2):
                for x in range(4):
                    r = 2 * kap + (x >> 1); d = 2 * (x & 1)
                    A.I(f"v_cvt_pk_bf16_f32 v{ST + 8*T + 4*kap + x}, v{ACC0 + 16*T + 4*d + r}, v{ACC0 + 16*T + 4*d + 4 + r}")
                A.vm('xst', f"buffer_store_dwordx4 {vr(ST + 8*T + 4*kap)}, v{vXst}, {srd(rWS)}, s{sXS if T == 0 else sT1} offen offset:{256*kap} sc1")
    stamp(A)
    XL = RAW
    vP = vT + 16; vP2 = vT + 17; vWt = vT + 18; vWn = vT + 19
    G = RAW + 64; WB = RAW + 32; PK = RAW + 16
    A.I(f"""
    v_and_b32 v{vT+13}, 15, v{vLane}
    v_lshrrev_b32 v{vT+15}, 4, v{vLane}
    v_mul_u32_u24 v{vWt}, 200, v{vT+13}
    v_lshl_add_u32 v{vWt}, v{vT+15}, 3, v{vWt}
    v_add_u32 v{vWt}, {L_W}, v{vWt}
    v_lshrrev_b32 v{vT+13}, 2, v{vLane}
    v_mul_u32_u24 v{vWn}, 200, v{vT+13}
    v_and_b32 v{vT+13}, 3, v{vLane}
    v_lshl_add_u32 v{vWn}, v{vT+13}, 3, v{vWn}
    v_add_u32 v{vWn}, {L_W}, v{vWn}
    v_mov_b32 v{vP}, 0
    v_mov_b32 v{vP2}, 0
    s_mov_b32 s{sC10}, 0x00003f80
    s_mov_b32 s{sC01}, 0x3f800000
    """)
    def xloads(tag):
        for q in range(4):
            A.vm(tag, f"buffer_load_dwordx4 {vr(XL + 4*q)}, v{vXld}, {srd(rWS)}, s{sXL[q]} offen sc1")
    if OPT['pnn']:
        assert 'wdma' not in A.vmq
        tiles = [(t, u) for u in range(7) for t in range(u + 1)]
        def wreads(i):
            t, u = tiles[i]
            A.ds(('w', i), f"ds_read_b64 {vr(WB + 4*(i & 3), 2)}, v{vWt} offset:{u*3200 + t*32}")
            if t < u:
                A.ds(('w', i), f"ds_read_b64_tr_b16 {vr(WB + 4*(i & 3) + 2, 2)}, v{vWn} offset:{t*3200 + u*32}")
        def contract(i):
            t, u = tiles[i]
            g = G + 4 * (i & 3); pk = PK + 2 * (i & 1); wb = WB + 4 * (i & 3)
            r = [f"v_cvt_pk_bf16_f32 v{pk}, v{g}, v{g+1}", f"v_cvt_pk_bf16_f32 v{pk+1}, v{g+2}, v{g+3}",
                 ('wait', i),
                 f"v_dot2_f32_bf16 v{vP}, v{pk}, v{wb}, v{vP}", f"v_dot2_f32_bf16 v{vP2}, v{pk+1}, v{wb+1}, v{vP2}"]
            if t < u:
                r += [f"v_dot2_f32_bf16 v{vP}, v{pk}, v{wb+2}, v{vP}", f"v_dot2_f32_bf16 v{vP2}, v{pk+1}, v{wb+3}, v{vP2}"]
            return r
        pend = []
        for i in range(len(tiles) + 2):
            if i < len(tiles) and tiles[i] == (0, 6): A.wait(vm=['t6'])
            if i == OPT['pollat']: xloads('xl')
            if i < len(tiles): wreads(i)
            if i >= 2: pend = contract(i - 2)
            for ks in range(4):
                if i < len(tiles):
                    t, u = tiles[i]; g = G + 4 * (i & 3)
                    A.I(f"v_mfma_f32_16x16x32_bf16 {vr(g)}, {ar(AE + 16*t + 4*ks)}, {ar(AE + 16*u + 4*ks)}, " + ("0" if ks == 0 else vr(g)))
                for _ in range(2):
                    if pend:
                        x = pend.pop(0)
                        if isinstance(x, tuple):
                            A.wait(ds=[('w', x[1])]); x = pend.pop(0)
                        A.I(x)
            assert not pend
    else:
        xloads('xl')
    stamp(A)
    H = RAW + 16; W2F = RAW + 24
    M = vT + 13
    A.wait(vm=['misc'])
    A.I(f"""
    v_add_f32 v{vP}, v{vP}, v{vP2}
    v_and_b32 v{M}, 3, v{vLane}
    v_cmp_eq_u32 vcc, s{sW}, v{M}
    v_add_f32_dpp v{vP}, v{vP}, v{vP} quad_perm:[1,0,3,2] row_mask:0xf bank_mask:0xf
    v_and_b32 v{M}, 8, v{vLane}
    v_lshlrev_b32 v{M}, 1, v{M}
    v_add_f32_dpp v{vP}, v{vP}, v{vP} quad_perm:[2,3,0,1] row_mask:0xf bank_mask:0xf
    v_xor_b32 v{M}, 16, v{M}
    v_cndmask_b32 v{vP}, 0, v{vP}, vcc
    """)
    for i in range(8):
        A.I(f"v_lshlrev_b32 v{W2F + i}, v{M}, v{vW2v + i}\nv_lshlrev_b32 v{H + i}, v{M}, v{vB1v + i}")
    for i in range(8):
        A.I(f"v_and_b32 v{W2F + i}, 0xffff0000, v{W2F + i}\nv_and_b32 v{H + i}, 0xffff0000, v{H + i}")
    A.I(f"s_mov_b32 s{sCNT}, 0x10000")
    A.I("Lpoll:")
    A.wait(vmall=True)
    A.I(f"v_max3_u32 v{M}, v{XL}, v{XL+1}, v{XL+2}")
    for i in range(3, 15, 2):
        A.I(f"v_max3_u32 v{M}, v{M}, v{XL+i}, v{XL+i+1}")
    A.I(f"""
    v_max_u32 v{M}, v{M}, v{XL+15}
    v_cmp_eq_u32 vcc, -1, v{M}
    s_sub_u32 s{sCNT}, s{sCNT}, 1
    s_cbranch_scc1 Lpollok
    s_cbranch_vccz Lpollok
    """)
    xloads('xl2')
    A.I("s_branch Lpoll\nLpollok:")
    A.vmq = []
    stamp(A)
    for q in range(4):
        for d in range(4):
            A.I(f"v_dot2_f32_bf16 v{H + 2*d}, v{XL + 4*q + d}, s{sC10}, v{H + 2*d}")
            A.I(f"v_dot2_f32_bf16 v{H + 2*d + 1}, v{XL + 4*q + d}, s{sC01}, v{H + 2*d + 1}")
    T1 = RAW + 32; T2 = RAW + 40
    c1 = 2 * 0.7978845608028654 * 1.4426950408889634; c2 = c1 * 0.044715
    A.I(f"v_mov_b32 v{M}, 0x{f2u(c1):08x}")
    for i in range(8): A.I(f"v_mul_f32 v{T1+i}, v{H+i}, v{H+i}")
    for i in range(8): A.I(f"v_fmamk_f32 v{T1+i}, v{T1+i}, 0x{f2u(c2):08x}, v{M}")
    for i in range(8): A.I(f"v_mul_f32 v{T1+i}, v{T1+i}, v{H+i}")
    for i in range(8): A.I(f"v_exp_f32 v{T1+i}, -v{T1+i}")
    for i in range(8): A.I(f"v_mul_f32 v{T2+i}, v{H+i}, v{W2F+i}")
    for i in range(8): A.I(f"v_add_f32 v{T1+i}, 1.0, v{T1+i}")
    for i in range(8): A.I(f"v_rcp_f32 v{T1+i}, v{T1+i}")
    for i in range(8): A.I(f"v_fmac_f32 v{vP}, v{T1+i}, v{T2+i}")
    A.I(f"""
    v_add_f32_dpp v{vP}, v{vP}, v{vP} row_ror:4 row_mask:0xf bank_mask:0xf
    v_add_f32_dpp v{vP}, v{vP}, v{vP} row_ror:8 row_mask:0xf bank_mask:0xf
    v_mov_b32 v{vP2}, v{vP}
    v_permlane16_swap_b32 v{vP}, v{vP2}
    v_add_f32 v{vP}, v{vP}, v{vP2}
    v_mov_b32 v{vP2}, v{vP}
    v_permlane32_swap_b32 v{vP}, v{vP2}
    v_add_f32 v{vP}, v{vP}, v{vP2}
    v_and_b32 v{M}, 3, v{vLane}
    v_lshlrev_b32 v{M}, 4, v{M}
    s_lshl_b32 s{sT0}, s{sW}, 2
    s_add_u32 s{sT0}, s{sT0}, {L_SCR}
    v_add_u32 v{M+1}, s{sT0}, v{M}
    """)
    A.ds('fin', f"ds_write_b32 v{M+1}, v{vP}")
    A.I(f"v_add_u32 v{M}, {L_SCR}, v{M}")
    A.wait(dsall=True)
    A.I(f"""
    s_barrier
    s_cmp_lg_u32 s{sW}, 0
    s_cbranch_scc1 Ldone
    """)
    A.ds('fin', f"ds_read_b128 {vr(T1)}, v{M}")
    A.I(f"""
    v_lshlrev_b32 v{vB2v}, 16, v{vB2v}
    s_lshr_b32 s{sT0}, s{sXL[0]}, 11
    v_lshlrev_b32 v{M}, 1, v{vLane}
    v_add_u32 v{M}, s{sT0}, v{M}
    """)
    A.wait(dsall=True)
    A.I(f"""
    v_add_f32 v{T1}, v{T1}, v{T1+1}
    v_add_f32 v{T1+2}, v{T1+2}, v{T1+3}
    v_add_f32 v{T1}, v{T1}, v{vB2v}
    v_add_f32 v{T1}, v{T1}, v{T1+2}
    v_cvt_pk_bf16_f32 v{T1}, v{T1}, v{T1}
    s_mov_b64 exec, 15
    global_store_short v{M}, v{T1}, {sp(sOUTP)}
    s_mov_b64 exec, -1
    Ldone:
    """)
    if OPT['stamps']:
        stamp(A)
        A.I(f"""
        s_waitcnt lgkmcnt(0)
        s_mov_b64 exec, 1
        s_lshl_b32 s{sT0}, s2, 2
        s_add_u32 s{sT0}, s{sT0}, s{sW}
        s_mul_i32 s{sT0}, s{sT0}, {8*nst[0]}
        s_add_u32 s{sT0}, s{sT0}, {8<<20}
        v_mov_b32 v{M}, s{sT0}
        """)
        for i in range(nst[0]):
            A.I(f"v_mov_b32 v{T1}, s{sST+2*i}\nv_mov_b32 v{T1+1}, s{sST+2*i+1}\nglobal_store_dwordx2 v{M}, {vr(T1,2)}, {sp(sWSP)} offset:{8*i}\ns_nop 1")
    A.I("Lend:\ns_endpgm")

def build(WT):
    nst[0] = 0
    A = Asm(); segs = {}
    def seg(name, f, *a):
        st = len(A.L); f(A, *a); segs[name] = A.L[st:]
    seg('pro', prologue)
    for m in range(6):
        seg(f'body{m}', body, m, WT)
        seg(f'side{m}', side, m)
    seg('tail', tail)
    return segs

WT = W(); build(WT); WT.mode = 'emit'; segs = build(WT)
b0 = [i.text for i in segs['body0']]
for m in range(1, 6): assert [i.text for i in segs[f'body{m}']] == b0, m
pro, _ = check(segs['pro'], pad=True)
bodyI = segs['body0']
jump = [Ins(f"s_setpc_b64 {sp(sSJ)}")]
_, v = check(pro + bodyI, label='pro+body'); assert not v, v
sides = []
for m in range(6):
    s = [Ins(f"s_add_u32 s{sSJ}, s{sSJ}, Lside{m+1}-Lside{m}"), Ins(f"s_addc_u32 s{sSJ+1}, s{sSJ+1}, 0")] if m < 5 else []
    s = s + segs[f'side{m}']
    full, _ = check(bodyI + jump + s, pad=True)
    s = full[len(bodyI) + 1:]
    assert [i.text for i in full[:len(bodyI)]] == b0
    if m < 5:
        s = s + [Ins("s_branch Lloop")]
        _, v = check(s + bodyI, label=f'side{m}+body'); assert not v, v
    sides.append(s)
full, _ = check(bodyI + jump + sides[5] + segs['tail'], pad=True)
tailI = full[len(bodyI) + 1 + len(sides[5]):]
def txt(L): return ''.join(('' if i.cls == 'label' else '  ') + i.text + '\n' for i in L)
out = f"""; deep_cross_pnn: split-K MFMA GEMM with LDS-resident table quarter + Gram (PNN) tail
; @launch grid=(256,1,1) block=(256,1,1) lds={L_TOTAL}
.amdgcn_target "amdgcn-amd-amdhsa--gfx950"
.text
.globl {KN}
.p2align 8
.type {KN},@function
{KN}:
"""
out += txt(pro) + "Lloop:\n" + txt(bodyI + jump)
for m in range(6):
    out += f"Lside{m}:\n" + txt(sides[m])
out += txt(tailI)
out += footer(512, 256, 102)
open(sys.argv[1], 'w').write(out)
print("waits:", WT.sites)
print("body instrs", len(bodyI), "pro", len(pro), "tail", len(tailI), "stamps", nst[0])
```

```python
import sys, struct
from asmlib import *
from common import KN, footer

OPT = dict(stamps=0, pnn=1, pollat=24, itst=0, touch=1, tlead=2, ctouch=1, pst=0, bpre=0, itouch=1)
for a in sys.argv[2:]:
    k, v = a.split('='); OPT[k] = int(v)

L_TAB = 0
L_IDX = 66560
L_W = 98304
L_E = 122880
L_SCR = 139264
L_TOTAL = 139520
sIDXP, sTABP, sWPP, sW1P, sB1P, sW2P, sB2P, sOUTP, sDBGP, sWSP = 4, 6, 8, 10, 12, 14, 16, 18, 20, 22
rIDX, rTAB, rWP, rW1, rWS = 24, 28, 32, 36, 40
sW, sX, sJ, sQ, sNT, sMT = 44, 45, 46, 47, 48, 49
sB = [50, 51, 52, 53]
sTCH = 54; sIE = 55
sSJ = 56
sEM0 = 58
sT0, sT1, sT2, sT3 = 59, 60, 61, 62
sPO = 63
sXL = [64, 65, 66, 67]
sXS = 68; sCNT = 69; sWM = 68
sC10, sC01 = 54, 55
sST = 70
def srd(r): return f"s[{r}:{r+3}]"
def sp(r): return f"s[{r}:{r+1}]"
vLane = 1; vB0 = 2; vB1 = 3; vSel = 4; vB0p = 5; vB1p = 6; vG0 = 7; vG1 = 8
vTch = 9; vDum = 10
vCpre = [11, 12, 13, 14]; vEr = [15, 16, 17, 18]; vEoff = 19
vIE = 20
vDma = [24, 25, 26, 27]
vXld = 28; vCnt = 30; vZero = 31; vLc = 29
ACC0 = 32; RAW = 64; BF = 128; EMB = 160; TMP = 192; IDX = 196; ADDR = 204
vIA = [212, 213, 214, 215]
vPois = 216
vT = 228
AE = 96
def vr(b, n=4): return f"v[{b}:{b+n-1}]"
def ar(b, n=4): return f"a[{b}:{b+n-1}]"
def acc(T, d): return vr(ACC0 + 16*T + 4*d) if T < 2 else ar((T - 2)*16 + 4*d)
def raw(slot, t, d=None):
    b = RAW + 16 * slot + 4 * t
    return vr(b) if d is None else f"v{b+d}"
def bf(buf, d, t=None):
    b = BF + 16 * buf + 4 * d
    return vr(b) if t is None else f"v{b+t}"
f2u = lambda x: struct.unpack('<I', struct.pack('<f', x))[0]
nst = [0]
def stamp(A):
    if OPT['stamps']:
        A.I(("s_memrealtime" if OPT['stamps'] >= 2 else "s_memtime") + f" {sp(sST + 2 * nst[0])}")
        nst[0] += 1

def bload(A, n, t, sreg):
    lo, hi = (vB0p, vB1p) if n % 4 == 0 else (vB0, vB1)
    A.vm(('raw', n, t), f"buffer_load_dwordx4 {raw(n & 3, t)}, v{lo if t < 2 else hi}, {srd(rW1)}, s{sreg} offen" + (" offset:2048" if t & 1 else ""))
def xf_dpp(n, t, d): return f"v_mov_b32_dpp v{TMP+d}, {raw(n & 3, t, d)} row_ror:8 row_mask:0xf bank_mask:0xf"
def xf_perm(n, t, d): return f"v_perm_b32 {bf(n & 1, d, t)}, v{TMP+d}, {raw(n & 3, t, d)}, v{vSel}"
def embread(A, n, T):
    A.ds(('emb', n, T), f"ds_read_b128 {vr(EMB + 4*T)}, v{ADDR + T}" + (" offset:32" if n & 1 else ""))
def addr_op(T, word):
    return f"v_add_u32_sdwa v{ADDR+T}, v{IDX+T}, v{vG1 if word else vG0} dst_sel:DWORD dst_unused:UNUSED_PAD src0_sel:WORD_{word} src1_sel:DWORD"
def idxread(A, m, T):
    A.ds(('idx', m, T), f"ds_read_b32 v{IDX+T}, v{vIA[T >> 1]}" + (" offset:3200" if T & 1 else ""))
def mfma(n, T, d):
    return f"v_mfma_f32_16x16x32_bf16 {acc(T, d)}, {bf(n & 1, d)}, {vr(EMB + 4*T)}, {acc(T, d)}"
def touch(A):
    if OPT['touch']:
        A.vm('tch', f"buffer_load_dword v{vDum}, v{vTch}, {srd(rW1)}, s{sTCH} offen")
def ieload(A, m):
    A.vm(('ie', m), f"buffer_load_dwordx4 {vr(vIE)}, v{vEoff}, {srd(rIDX)}, s{sIE} offen")

class W:
    def __init__(self): self.sites = {}; self.mode = 'rec'
    def __call__(self, A, site, **kw):
        if self.mode == 'rec':
            nv, nd = A.wait(**kw)
            o = self.sites.get(site, (None, None))
            mn = lambda a, b: b if a is None else (a if b is None else min(a, b))
            self.sites[site] = (mn(o[0], nv), mn(o[1], nd))
        else:
            A.wait(force=self.sites[site], **kw)

FSTEP = 16 * 131072
def body(A, m, WT):
    for e in range(4):
        n = 4 * m + e
        for g in range(32):
            T, d = g >> 2, g & 3
            t, ph = g >> 3, g & 7
            A.I(mfma(n, T, d))
            dma = {(0, 1): 0, (0, 2): 1, (0, 3): 2, (1, 0): 3}.get((e, t))
            if ph == 0:
                A.I(xf_dpp(n + 1, t, 0)); A.I(xf_dpp(n + 1, t, 1))
            elif ph == 1:
                A.I(xf_dpp(n + 1, t, 2)); A.I(xf_dpp(n + 1, t, 3))
            elif ph == 2:
                A.I(xf_perm(n + 1, t, 0)); A.I(xf_perm(n + 1, t, 1))
            elif ph == 3:
                embread(A, n + 1, T); A.I(xf_perm(n + 1, t, 2))
            elif ph == 4:
                A.I(xf_perm(n + 1, t, 3))
                A.I(addr_op(t + 4 * (e & 1), 1 if e < 2 else 0))
            elif ph == 5:
                bload(A, n + 5, t, sB[e])
                if dma is not None:
                    A.I(f"s_mov_b32 m0, s{sEM0}" if dma == 0 else "s_add_u32 m0, m0, 1024")
                elif t == 3: A.I(f"s_add_u32 s{sB[e]}, s{sB[e]}, {FSTEP}")
            elif ph == 6:
                if dma is not None:
                    A.vm(('dma', m, dma), f"buffer_load_dwordx4 v{vDma[dma]}, {srd(rTAB)}, 0 offen lds")
                    if t == 3: A.I(f"s_add_u32 s{sB[e]}, s{sB[e]}, {FSTEP}")
                if e == 0 and t == 0:
                    A.vm(('pois', m), f"buffer_store_dwordx4 {vr(vPois)}, v{vXld}, {srd(rWS)}, s{sPO} offen sc1")
                if e in (1, 2): idxread(A, m + 1, t + 4 * (e - 1))
                if e == 1 and t in (1, 3): A.I(f"v_add_u32 v{vIA[t >> 1]}, 32, v{vIA[t >> 1]}")
                if e == 2 and t in (1, 3): A.I(f"v_add_u32 v{vIA[2 + (t >> 1)]}, 32, v{vIA[2 + (t >> 1)]}")
                if e == 1 and t == 2: A.I(f"s_add_u32 s{sPO}, s{sPO}, 4096")
                if e == 2 and t == 0: A.I(f"s_add_u32 s{sTCH}, s{sTCH}, {FSTEP}")
                if e == 3:
                    if t < 2:
                        for i in (2 * t, 2 * t + 1):
                            A.I(f"v_lshl_add_u32 v{vDma[i]}, v{vIE+i}, 8, v{vCpre[i]}")
                    if t == 2:
                        ieload(A, m + 2); A.I(f"s_add_u32 s{sIE}, s{sIE}, 64")
                    if t == 3: touch(A)
            else:
                embread(A, n + 1, T)
                dst = []; vmt = []
                if t < 3:
                    dst += [('emb', n, 2*t+2), ('emb', n, 2*t+3)]; vmt += [('raw', n + 1, t + 1)]
                    if e >= 2: dst += [('idx', m + 1, t + 1 + 4 * (e - 2))]
                else:
                    dst += [('emb', n + 1, 0), ('emb', n + 1, 1)]; vmt += [('raw', n + 2, 0)]
                    if e in (1, 2): dst += [('idx', m + 1, 4 * (e - 1))]
                if e == 0 and t == 0: dst += [('eread', m - 1)]
                if e == 2 and t == 3: vmt += [('ie', m + 1)]
                if e == 3 and t == 3: vmt += [('dma', m, 3)]
                WT(A, ('g', e, t), ds=dst, vm=vmt)

def side(A, m):
    if OPT['itst'] and m < 5: stamp(A)
    for ks in range(4):
        A.ds(('eread', m), f"ds_read_b128 {ar(AE + 16*m + 4*ks)}, v{vEr[ks]}")
    A.I(f"s_mov_b32 m0, s{sWM}")
    A.I(f"s_add_u32 s{sWM}, s{sWM}, 1024")
    A.vm('wdma', f"buffer_load_dwordx4 v{vT+9}, {srd(rWP)}, 0 offen lds")
    if m < 5: A.I(f"v_add_u32 v{vT+9}, 1024, v{vT+9}")
    if m == 1:
        for h in range(2):
            A.ds('p24', f"ds_read_u16 v{vT+6+h}, v{vT+10} offset:{192 + 12800*h}")
    if m == 2:
        assert 'p24' not in A.dsq
        for h in range(2):
            A.ds('p24w', f"ds_write_b32 v{vT+11}, v{vT+6+h} offset:{12800*h}")
    if m == 3:
        A.I(f"s_mul_i32 s{sT0}, s{sW}, {3*131072}")
        A.I(f"s_sub_u32 s{sB[3]}, s{sB[3]}, s{sT0}")
        A.I(f"v_mov_b32 v{vB0p}, v{vT+3}")
        A.I(f"v_add_u32 v{vB1p}, 4096, v{vT+3}")
        A.I(f"s_mov_b32 s{sPO}, 0x7ff00000")
        assert not any(isinstance(x, tuple) and x[0] == 'pois' for x in A.vmq), A.vmq
        A.I("s_mov_b64 exec, 1")
        A.ds('lc', f"ds_add_rtn_u32 v{vLc}, v{vT+4}, v{vT+1}")
        A.I("s_mov_b64 exec, -1")
    if m == 4:
        assert 'lc' not in A.dsq
        A.I(f"v_readfirstlane_b32 s{sT0}, v{vLc}")
        for i in range(4):
            A.I(f"v_sub_u32 v{vIA[i]}, v{vIA[i]}, v{vT+5}")
        A.I(f"v_and_b32 v{vG0}, 48, v{vLane}")
        A.I(f"""
        s_cmp_lg_u32 s{sT0}, 3
        s_cbranch_scc1 Lnoatom
        s_mov_b64 exec, 1
        global_atomic_add v{vT}, v{vT+1}, {sp(sDBGP)} sc1
        s_mov_b64 exec, -1
        Lnoatom:
        """)

def prologue(A):
    A.I(f"""
    s_cmp_ge_u32 s2, 256
    s_cbranch_scc1 Lend
    """)
    stamp(A)
    A.I(f"""
    s_load_dwordx16 s[4:19], s[0:1], 0
    s_load_dwordx4 s[20:23], s[0:1], 64
    s_getpc_b64 {sp(sSJ)}
    Lpcref:
    """)
    if OPT['ctouch']:
        A.I(f"""
        v_lshlrev_b32 v{vT}, 7, v0
        v_min_u32 v{vT}, Lend-Lpcref, v{vT}
        """)
        A.vm('tch', f"global_load_dword v{vDum}, v{vT}, {sp(sSJ)}")
    A.I(f"""
    v_and_b32 v{vLane}, 63, v0
    v_lshrrev_b32 v{vT}, 6, v0
    s_and_b32 s{sX}, s2, 7
    v_readfirstlane_b32 s{sW}, v{vT}
    s_lshr_b32 s{sJ}, s2, 3
    s_lshr_b32 s{sQ}, s{sX}, 1
    s_and_b32 s{sT2}, s{sX}, 1
    s_lshl_b32 s{sNT}, s{sT2}, 2
    s_lshr_b32 s{sT0}, s{sJ}, 3
    s_add_u32 s{sNT}, s{sNT}, s{sT0}
    s_and_b32 s{sMT}, s{sJ}, 7
    s_add_u32 s{sSJ}, s{sSJ}, Lside0-Lpcref
    s_addc_u32 s{sSJ+1}, s{sSJ+1}, 0
    """)
    A.I(f"""
    v_bfe_u32 v{vT}, v{vLane}, 4, 1
    v_bfe_u32 v{vT+1}, v{vLane}, 3, 1
    v_lshl_add_u32 v{vT}, v{vT}, 3, v{vT+1}
    v_and_b32 v{vT+2}, 7, v{vLane}
    v_lshlrev_b32 v{vT+2}, 4, v{vT+2}
    v_lshl_add_u32 v{vT}, v{vT}, 10, v{vT+2}
    v_lshrrev_b32 v{vT+2}, 5, v{vLane}
    v_lshl_add_u32 v{vB0}, v{vT+2}, 18, v{vT}
    v_lshl_add_u32 v{vT+3}, v{vT+2}, 14, v{vT}
    v_add_u32 v{vB1}, 4096, v{vB0}
    v_mov_b32 v{vB0p}, v{vB0}
    v_mov_b32 v{vB1p}, v{vB1}
    v_mov_b32 v{vSel}, 0x05040100
    v_mov_b32 v{vT+6}, 0x03020706
    v_cmp_eq_u32 vcc, 1, v{vT+1}
    s_lshl_b32 s{sT0}, s{sQ}, 15
    s_lshl_b32 s{sT1}, s{sNT}, 7
    v_cndmask_b32 v{vSel}, v{vSel}, v{vT+6}, vcc
    s_lshl_b32 s{sTCH}, s{sT2}, 9
    s_add_u32 s{sTCH}, s{sTCH}, s{sT0}
    s_add_u32 s{sT0}, s{sT0}, s{sT1}
    s_lshl_b32 s{sT1}, s{sW}, 19
    s_add_u32 s{sB[3]}, s{sT0}, s{sT1}
    s_add_u32 s{sB[0]}, s{sB[3]}, 16384
    s_add_u32 s{sB[1]}, s{sB[3]}, 131072
    s_add_u32 s{sB[2]}, s{sB[3]}, {131072 + 16384}
    """)
    A.I(f"""
    s_lshl_b32 s{sT0}, s{sJ}, 2
    s_add_u32 s{sT0}, s{sT0}, s{sW}
    s_lshr_b32 s{sT1}, s{sT0}, 3
    s_lshl_b32 s{sT1}, s{sT1}, 17
    s_and_b32 s{sT3}, s{sT0}, 7
    s_lshl_b32 s{sT3}, s{sT3}, 12
    s_add_u32 s{sT1}, s{sT1}, s{sT3}
    s_add_u32 s{sTCH}, s{sTCH}, s{sT1}
    v_lshrrev_b32 v{vT}, 4, v{vLane}
    v_bfe_u32 v{vT+1}, v{vLane}, 2, 2
    v_lshlrev_b32 v{vT+1}, 7, v{vT+1}
    v_lshl_add_u32 v{vTch}, v{vT}, 10, v{vT+1}
    """)
    A.I(f"""
    v_lshrrev_b32 v{vT+10}, 2, v{vLane}
    v_lshlrev_b32 v{vT+8}, 8, v{vT+10}
    v_lshlrev_b32 v{vT+10}, 7, v{vT+10}
    v_and_b32 v{vT+6}, 3, v{vLane}
    v_lshl_add_u32 v{vT+8}, v{vT+6}, 4, v{vT+8}
    s_lshl_b32 s{sT1}, s{sQ}, 6
    v_add_u32 v{vT+8}, s{sT1}, v{vT+8}
    v_lshlrev_b32 v{vXld}, 4, v0
    v_lshrrev_b32 v{vT+11}, 1, v{vLane}
    v_min_u32 v{vT+11}, 24, v{vT+11}
    v_lshlrev_b32 v{vT+11}, 7, v{vT+11}
    s_lshl_b32 s{sT1}, s{sT0}, 11
    s_mul_i32 s{sT2}, s{sT0}, 3200
    s_mul_i32 s{sT3}, s{sMT}, 51200
    s_waitcnt lgkmcnt(0)
    """)
    def mksrd(r, p, size):
        A.I(f"s_mov_b32 s{r}, s{p}\ns_mov_b32 s{r+1}, s{p+1}\ns_mov_b32 s{r+2}, {size}\ns_mov_b32 s{r+3}, 0x20000")
    mksrd(rIDX, sIDXP, 409600)
    if OPT['itouch']: A.vm('tch', f"buffer_load_dword v{vDum}, v{vT+11}, {srd(rIDX)}, s{sT2} offen")
    mksrd(rTAB, sTABP, 256000)
    if OPT['itouch']: A.vm('tch', f"buffer_load_dword v{vDum}, v{vT+10}, {srd(rTAB)}, s{sT1} offen")
    mksrd(rW1, sW1P, 13107200)
    touch(A)
    A.I(f"s_add_u32 s{sTCH}, s{sTCH}, {FSTEP}")
    stamp(A)
    IC = BF
    for k in range(13):
        A.vm(('ic', k), f"buffer_load_dwordx4 {vr(IC + 4*k)}, v{vXld}, {srd(rIDX)}, s{sT3} offen")
        if k < 12: A.I(f"s_add_u32 s{sT3}, s{sT3}, 4096")
    for t in range(4): bload(A, 0, t, sB[3])
    for t in range(4): bload(A, 1, t, sB[0])
    mksrd(rWP, sWPP, 20000)
    mksrd(rWS, sWSP, 4194304)
    A.I(f"""
    v_mov_b32 v{vZero}, 0
    v_mov_b32 v{TMP}, 0
    v_mov_b32 v{TMP+1}, 0
    v_mov_b32 v{TMP+2}, 0
    v_mov_b32 v{TMP+3}, 0
    v_lshlrev_b32 v{vT+12}, 3, v0
    v_add_u32 v{vT+12}, {L_IDX}, v{vT+12}
    v_mov_b32 v{vT+13}, 0x00410041
    v_mov_b32 v{vT+14}, 0x05040100
    """)
    for i in range(2): A.I(f"v_mfma_f32_32x32x16_bf16 {vr(ACC0 + 16*i, 16)}, {vr(TMP)}, {vr(TMP)}, 0")
    for i in range(6): A.I(f"v_mfma_f32_32x32x16_bf16 {ar(16*i, 16)}, {vr(TMP)}, {vr(TMP)}, 0")
    A.I(f"""
    v_and_b32 v{vT+1}, 15, v{vLane}
    v_mul_u32_u24 v{vT}, 200, v{vT+1}
    v_lshrrev_b32 v{vT+2}, 5, v{vLane}
    v_lshlrev_b32 v{vT+5}, 2, v{vT+2}
    v_add_u32 v{vT}, v{vT}, v{vT+5}
    s_lshl_b32 s{sT1}, s{sW}, 3
    s_add_u32 s{sT1}, s{sT1}, {L_IDX}
    v_add_u32 v{vT+5}, 192, v{vT+5}
    v_mul_u32_u24 v{vT+11}, 200, v{vLane}
    v_add_u32 v{vT+11}, s{sT1}, v{vT+11}
    s_mul_i32 s{sT2}, s{sW}, 6
    v_subrev_u32 v{vT+10}, s{sT2}, v{vT+11}
    s_mul_i32 s{sT2}, s{sW}, 6144
    s_add_u32 s{sWM}, s{sT2}, {L_W}
    v_lshlrev_b32 v{vT+9}, 4, v{vLane}
    v_add_u32 v{vT+9}, s{sT2}, v{vT+9}
    v_and_b32 v{vG0}, 16, v{vLane}
    v_and_b32 v{vG1}, 16, v{vLane}
    """)
    for i in range(4):
        A.I(f"""
        s_add_u32 s{sT2}, s{sW}, {i}
        s_and_b32 s{sT2}, s{sT2}, 3
        s_mul_i32 s{sT2}, s{sT2}, 6400
        s_add_u32 s{sT2}, s{sT2}, s{sT1}
        v_add_u32 v{vIA[i]}, s{sT2}, v{vT}
        """)
    A.I(f"""
    s_lshl_b32 s{sT1}, s{sNT}, 2
    s_add_u32 s{sT1}, s{sT1}, s{sQ}
    s_lshl_b32 s{sT2}, s{sMT}, 5
    s_add_u32 s{sT2}, s{sT2}, s{sT1}
    s_lshl_b32 s{sXL[0]}, s{sT2}, 14
    s_mov_b32 s{sPO}, s{sXL[0]}
    s_lshl_b32 s{sT2}, s{sT2}, 2
    s_add_u32 s{sT2}, s{sT2}, s{sW}
    s_mul_i32 s{sIE}, s{sT2}, 400
    v_and_b32 v{vEoff}, 48, v{vLane}
    """)
    ieload(A, 0)
    A.I(f"""
    s_add_u32 s{sIE}, s{sIE}, 64
    s_lshl_b32 s{sEM0}, s{sW}, 12
    s_add_u32 s{sEM0}, s{sEM0}, {L_E}
    v_lshrrev_b32 v{vT+2}, 2, v{vEoff}
    v_xor_b32 v{vT+2}, v{vT+2}, v{vT+1}
    v_lshlrev_b32 v{vCpre[0]}, 4, v{vT+2}
    v_xor_b32 v{vCpre[1]}, 16, v{vCpre[0]}
    v_xor_b32 v{vCpre[2]}, 32, v{vCpre[0]}
    v_xor_b32 v{vCpre[3]}, 48, v{vCpre[0]}
    v_lshrrev_b32 v{vT+2}, 4, v{vLane}
    v_xor_b32 v{vT+2}, v{vT+2}, v{vT+1}
    v_lshlrev_b32 v{vT+2}, 4, v{vT+2}
    v_and_b32 v{vT+6}, 3, v{vLane}
    v_lshl_add_u32 v{vT+2}, v{vT+6}, 10, v{vT+2}
    v_lshrrev_b32 v{vT+6}, 2, v{vT+1}
    v_lshl_add_u32 v{vT+2}, v{vT+6}, 8, v{vT+2}
    v_add_u32 v{vEr[0]}, s{sEM0}, v{vT+2}
    v_xor_b32 v{vEr[1]}, 64, v{vEr[0]}
    v_xor_b32 v{vEr[2]}, 0x80, v{vEr[0]}
    v_xor_b32 v{vEr[3]}, 0xc0, v{vEr[0]}
    v_mov_b32 v{vPois}, -1
    v_mov_b32 v{vPois+1}, -1
    v_mov_b32 v{vPois+2}, -1
    v_mov_b32 v{vPois+3}, -1
    s_lshl_b32 s{sT1}, s{sMT}, 5
    s_lshr_b32 s{sT2}, s{sNT}, 1
    s_lshl_b32 s{sT2}, s{sT2}, 3
    s_add_u32 s{sT2}, s{sT2}, s{sT1}
    v_mov_b32 v{vT}, s{sT2}
    v_mov_b32 v{vT+1}, 1
    s_lshl_b32 s{sT2}, s{sW}, 3
    s_add_u32 s{sT2}, s{sT2}, s{sT1}
    v_mov_b32 v{vT+2}, s{sT2}
    v_mov_b32 v{vT+4}, {L_SCR + 128}
    """)
    A.ds('lc0', f"ds_write_b32 v{vT+4}, v{vZero}")
    if OPT['pst']: stamp(A)
    A.I(f"""
    s_lshl_b32 s{sT1}, s{sJ}, 1
    s_add_u32 s{sT1}, s{sT1}, s{sW}
    """)
    def conv(k):
        A.wait(vm=[('ic', k)])
        if OPT['pst'] and k in (0, 6): stamp(A)
        b = IC + 4 * k
        A.I(f"""
        v_perm_b32 v{b}, v{b+1}, v{b}, v{vT+14}
        v_perm_b32 v{b+1}, v{b+3}, v{b+2}, v{vT+14}
        v_pk_mul_lo_u16 v{b}, v{b}, v{vT+13}
        v_pk_mul_lo_u16 v{b+1}, v{b+1}, v{vT+13}
        v_and_b32 v{b}, 0xfff0fff0, v{b}
        v_and_b32 v{b+1}, 0xfff0fff0, v{b+1}
        """)
        A.ds('icw', f"ds_write_b64 v{vT+12}, {vr(b, 2)} offset:{2048*k}")
    for i in range(16):
        A.I(f"""
        s_and_b32 s{sT1}, s{sT1}, 63
        s_mul_i32 m0, s{sT1}, 1040
        s_lshl_b32 s{sT3}, s{sT1}, 12
        """)
        A.vm('fill', f"buffer_load_dwordx4 v{vT+8}, {srd(rTAB)}, s{sT3} offen lds")
        if i < 15: A.I(f"s_add_u32 s{sT1}, s{sT1}, 4")
        if i >= 3: conv(i - 3)
    for _ in range(OPT['tlead'] - 1):
        touch(A); A.I(f"s_add_u32 s{sTCH}, s{sTCH}, {FSTEP}")
    touch(A)
    stamp(A)
    A.wait(ds=['icw'], vm=[('raw', 0, 3), ('ie', 0)])
    for t in range(4):
        for d in range(4): A.I(xf_dpp(0, t, d))
        for d in range(4): A.I(xf_perm(0, t, d))
    for i in range(4):
        A.I(f"v_lshl_add_u32 v{vDma[i]}, v{vIE+i}, 8, v{vCpre[i]}")
    ieload(A, 1); A.I(f"s_add_u32 s{sIE}, s{sIE}, 64")
    A.I(f"s_add_u32 s{sB[3]}, s{sB[3]}, {FSTEP}\ns_add_u32 s{sB[0]}, s{sB[0]}, {FSTEP}")
    if OPT['bpre']:
        for t in range(4): bload(A, 2, t, sB[1])
        for t in range(4): bload(A, 3, t, sB[2])
        for t in range(4): bload(A, 4, t, sB[3])
    if OPT['pst']: stamp(A)
    A.wait(vm=['fill'])
    if OPT['pst']: stamp(A)
    A.I("s_barrier")
    stamp(A)
    for T in range(8): idxread(A, 0, T)
    if not OPT['bpre']:
        for t in range(4): bload(A, 2, t, sB[1])
    for T in range(8):
        if T % 4 == 0: A.wait(ds=[('idx', 0, T + 3)])
        A.I(addr_op(T, 0))
        embread(A, 0, T)
    for i in range(4): A.I(f"v_add_u32 v{vIA[i]}, 32, v{vIA[i]}")
    if not OPT['bpre']:
        for t in range(4): bload(A, 3, t, sB[2])
        for t in range(4): bload(A, 4, t, sB[3])
    A.I(f"s_add_u32 s{sB[1]}, s{sB[1]}, {FSTEP}\ns_add_u32 s{sB[2]}, s{sB[2]}, {FSTEP}\ns_add_u32 s{sB[3]}, s{sB[3]}, {FSTEP}")
    A.wait(ds=[('emb', 0, 0), ('emb', 0, 1)], vm=[('raw', 1, 0)])
    stamp(A)

def tail(A):
    n = 24
    stamp(A)
    vImg = [vT + 8, vT + 9, vT + 10]; vImgR = vT + 7
    vB1v = IDX
    vW2v = ADDR
    vB2v = vT + 11; vT6 = vT + 12
    A.vm('cnt', f"global_load_dword v{vCnt}, v{vT+2}, {sp(sDBGP)} sc1")
    A.I(f"""
    v_and_b32 v{vT+13}, 3, v{vLane}
    v_lshlrev_b32 v{vT+13}, 2, v{vT+13}
    s_sub_u32 s{sIE}, s{sIE}, 128
    """)
    A.vm('t6i', f"buffer_load_dword v{vT6}, v{vT+13}, {srd(rIDX)}, s{sIE} offen")
    A.I(f"v_lshlrev_b32 v{vImgR}, 4, v{vLane}")
    for tau in (1, 2, 3):
        A.I(f"""
        s_add_u32 s{sT0}, s{sW}, {tau}
        s_and_b32 s{sT0}, s{sT0}, 3
        s_mul_i32 s{sT0}, s{sT0}, 24576
        s_add_u32 s{sT0}, s{sT0}, {(tau-1)*8192}
        v_add_u32 v{vImg[tau-1]}, s{sT0}, v{vImgR}
        """)
    A.I(f"s_mul_i32 s{sT0}, s{sW}, 24576\nv_add_u32 v{vImgR}, s{sT0}, v{vImgR}")
    A.wait(dsall=True)
    A.I("s_barrier")
    vXst = vT + 14
    extra = f"""
    v_lshrrev_b32 v{vT+13}, 5, v{vLane}
    v_lshlrev_b32 v{vT+13}, 7, v{vT+13}
    v_bfe_u32 v{vT+15}, v{vLane}, 2, 1
    v_lshl_add_u32 v{vT+13}, v{vT+15}, 6, v{vT+13}
    v_bfe_u32 v{vT+15}, v{vLane}, 4, 1
    v_lshl_add_u32 v{vT+13}, v{vT+15}, 5, v{vT+13}
    s_lshl_b32 s{sT1}, s{sW}, 8
    v_add_u32 v{vT+13}, s{sT1}, v{vT+13}
    VM global_load_dwordx4 {vr(vB1v)}, v{vT+13}, {sp(sB1P)}
    VM global_load_dwordx4 {vr(vB1v+4)}, v{vT+13}, {sp(sB1P)} offset:16
    VM global_load_dwordx4 {vr(vW2v)}, v{vT+13}, {sp(sW2P)}
    VM global_load_dwordx4 {vr(vW2v+4)}, v{vT+13}, {sp(sW2P)} offset:16
    VM global_load_ushort v{vB2v}, v{vZero}, {sp(sB2P)}
    v_bfe_u32 v{vXst}, v{vLane}, 2, 2
    v_lshlrev_b32 v{vXst}, 14, v{vXst}
    v_lshrrev_b32 v{vT+15}, 4, v{vLane}
    v_lshl_add_u32 v{vXst}, v{vT+15}, 6, v{vXst}
    v_and_b32 v{vT+15}, 3, v{vLane}
    v_lshl_add_u32 v{vXst}, v{vT+15}, 4, v{vXst}
    s_lshl_b32 s{sXS}, s{sMT}, 2
    s_add_u32 s{sXS}, s{sXS}, s{sW}
    s_lshl_b32 s{sXS}, s{sXS}, 17
    s_lshl_b32 s{sT0}, s{sQ}, 12
    s_add_u32 s{sXS}, s{sXS}, s{sT0}
    s_lshl_b32 s{sT0}, s{sNT}, 9
    s_add_u32 s{sXS}, s{sXS}, s{sT0}
    s_add_u32 s{sT1}, s{sXS}, 65536
    s_add_u32 s{sXL[1]}, s{sXL[0]}, 4096
    s_add_u32 s{sXL[2]}, s{sXL[0]}, 8192
    s_add_u32 s{sXL[3]}, s{sXL[0]}, 12288
    """.strip().split('\n')
    extra = [x.strip() for x in extra]
    def emit_extra(k):
        for _ in range(k):
            if extra:
                x = extra.pop(0)
                if x.startswith('VM '): A.vm('misc', x[3:])
                else: A.I(x)
    pend = []; ready = []
    seq = [(T, d) for T in (2, 3, 4, 5, 6, 7, 0, 1) for d in range(4)]
    for i, (T, d) in enumerate(seq):
        A.I(mfma(n, T, d))
        if T >= 2: pend.append((i, f"ds_write_b128 v{vImg[(T-2) >> 1]}, {acc(T, d)} offset:{1024*(4*(T&1) + d)}"))
        if pend and pend[0][0] <= i - 3:
            A.ds('imgw', pend.pop(0)[1]); emit_extra(1)
        else: emit_extra(2)
    while pend: A.ds('imgw', pend.pop(0)[1])
    emit_extra(99)
    A.wait(vm=['t6i', 'cnt'])
    A.I(f"""
    v_lshl_add_u32 v{vT6}, v{vT6}, 8, v{vEoff}
    v_and_b32 v{vT+13}, 12, v{vLane}
    v_cmp_ne_u32 vcc, 0, v{vT+13}
    v_mov_b32 v{vT+15}, 0x7fff0000
    s_mov_b32 s{sCNT}, 0x10000
    v_cndmask_b32 v{vT6}, v{vT6}, v{vT+15}, vcc
    """)
    for ks in range(4):
        A.vm('t6', f"buffer_load_dwordx4 {ar(AE + 96 + 4*ks)}, v{vT6}, {srd(rTAB)}, 0 offen offset:{64*ks}")
    A.I(f"""
    Lchk:
    v_readfirstlane_b32 s{sT0}, v{vCnt}
    s_cmp_ge_u32 s{sT0}, 8
    s_cbranch_scc1 Lchkok
    global_load_dword v{vCnt}, v{vT+2}, {sp(sDBGP)} sc1
    s_sub_u32 s{sCNT}, s{sCNT}, 1
    s_waitcnt vmcnt(0)
    s_cbranch_scc0 Lchk
    Lchkok:
    """)
    assert not any(isinstance(x, tuple) and x[0] == 'raw' for x in A.vmq)
    A.wait(dsall=True)
    A.I("s_barrier")
    stamp(A)
    IMG = RAW
    order = [(sg, i2) for h in range(2) for sg in range(3) for i2 in range(4*h, 4*h + 4)]
    for sg, i2 in order:
        A.ds(('imgr', sg, i2), f"ds_read_b128 {vr(IMG + 32*sg + 4*i2)}, v{vImgR} offset:{8192*sg + 1024*i2}")
    ST = EMB
    for k, (sg, i2) in enumerate(order):
        if k % 2 == 0: A.wait(ds=[('imgr',) + order[k + 1]])
        for r in range(4):
            A.I(f"v_add_f32 v{ACC0 + 4*i2 + r}, v{ACC0 + 4*i2 + r}, v{IMG + 32*sg + 4*i2 + r}")
        if k % 12 == 11:
            T = k // 12
            for kap in range(2):
                for x in range(4):
                    r = 2 * kap + (x >> 1); d = 2 * (x & 1)
                    A.I(f"v_cvt_pk_bf16_f32 v{ST + 8*T + 4*kap + x}, v{ACC0 + 16*T + 4*d + r}, v{ACC0 + 16*T + 4*d + 4 + r}")
                A.vm('xst', f"buffer_store_dwordx4 {vr(ST + 8*T + 4*kap)}, v{vXst}, {srd(rWS)}, s{sXS if T == 0 else sT1} offen offset:{256*kap} sc1")
    stamp(A)
    XL = RAW
    vP = vT + 16; vP2 = vT + 17; vWt = vT + 18; vWn = vT + 19
    G = RAW + 64; WB = RAW + 32; PK = RAW + 16
    A.I(f"""
    v_and_b32 v{vT+13}, 15, v{vLane}
    v_lshrrev_b32 v{vT+15}, 4, v{vLane}
    v_mul_u32_u24 v{vWt}, 200, v{vT+13}
    v_lshl_add_u32 v{vWt}, v{vT+15}, 3, v{vWt}
    v_add_u32 v{vWt}, {L_W}, v{vWt}
    v_lshrrev_b32 v{vT+13}, 2, v{vLane}
    v_mul_u32_u24 v{vWn}, 200, v{vT+13}
    v_and_b32 v{vT+13}, 3, v{vLane}
    v_lshl_add_u32 v{vWn}, v{vT+13}, 3, v{vWn}
    v_add_u32 v{vWn}, {L_W}, v{vWn}
    v_mov_b32 v{vP}, 0
    v_mov_b32 v{vP2}, 0
    s_mov_b32 s{sC10}, 0x00003f80
    s_mov_b32 s{sC01}, 0x3f800000
    """)
    def xloads(tag):
        for q in range(4):
            A.vm(tag, f"buffer_load_dwordx4 {vr(XL + 4*q)}, v{vXld}, {srd(rWS)}, s{sXL[q]} offen sc1")
    if OPT['pnn']:
        assert 'wdma' not in A.vmq
        tiles = [(t, u) for u in range(7) for t in range(u + 1)]
        def wreads(i):
            t, u = tiles[i]
            A.ds(('w', i), f"ds_read_b64 {vr(WB + 4*(i & 3), 2)}, v{vWt} offset:{u*3200 + t*32}")
            if t < u:
                A.ds(('w', i), f"ds_read_b64_tr_b16 {vr(WB + 4*(i & 3) + 2, 2)}, v{vWn} offset:{t*3200 + u*32}")
        def contract(i):
            t, u = tiles[i]
            g = G + 4 * (i & 3); pk = PK + 2 * (i & 1); wb = WB + 4 * (i & 3)
            r = [f"v_cvt_pk_bf16_f32 v{pk}, v{g}, v{g+1}", f"v_cvt_pk_bf16_f32 v{pk+1}, v{g+2}, v{g+3}",
                 ('wait', i),
                 f"v_dot2_f32_bf16 v{vP}, v{pk}, v{wb}, v{vP}", f"v_dot2_f32_bf16 v{vP2}, v{pk+1}, v{wb+1}, v{vP2}"]
            if t < u:
                r += [f"v_dot2_f32_bf16 v{vP}, v{pk}, v{wb+2}, v{vP}", f"v_dot2_f32_bf16 v{vP2}, v{pk+1}, v{wb+3}, v{vP2}"]
            return r
        pend = []
        for i in range(len(tiles) + 2):
            if i < len(tiles) and tiles[i] == (0, 6): A.wait(vm=['t6'])
            if i == OPT['pollat']: xloads('xl')
            if i < len(tiles): wreads(i)
            if i >= 2: pend = contract(i - 2)
            for ks in range(4):
                if i < len(tiles):
                    t, u = tiles[i]; g = G + 4 * (i & 3)
                    A.I(f"v_mfma_f32_16x16x32_bf16 {vr(g)}, {ar(AE + 16*t + 4*ks)}, {ar(AE + 16*u + 4*ks)}, " + ("0" if ks == 0 else vr(g)))
                for _ in range(2):
                    if pend:
                        x = pend.pop(0)
                        if isinstance(x, tuple):
                            A.wait(ds=[('w', x[1])]); x = pend.pop(0)
                        A.I(x)
            assert not pend
    else:
        xloads('xl')
    stamp(A)
    H = RAW + 16; W2F = RAW + 24
    M = vT + 13
    A.wait(vm=['misc'])
    A.I(f"""
    v_add_f32 v{vP}, v{vP}, v{vP2}
    v_and_b32 v{M}, 3, v{vLane}
    v_cmp_eq_u32 vcc, s{sW}, v{M}
    v_add_f32_dpp v{vP}, v{vP}, v{vP} quad_perm:[1,0,3,2] row_mask:0xf bank_mask:0xf
    v_and_b32 v{M}, 8, v{vLane}
    v_lshlrev_b32 v{M}, 1, v{M}
    v_add_f32_dpp v{vP}, v{vP}, v{vP} quad_perm:[2,3,0,1] row_mask:0xf bank_mask:0xf
    v_xor_b32 v{M}, 16, v{M}
    v_cndmask_b32 v{vP}, 0, v{vP}, vcc
    """)
    for i in range(8):
        A.I(f"v_lshlrev_b32 v{W2F + i}, v{M}, v{vW2v + i}\nv_lshlrev_b32 v{H + i}, v{M}, v{vB1v + i}")
    for i in range(8):
        A.I(f"v_and_b32 v{W2F + i}, 0xffff0000, v{W2F + i}\nv_and_b32 v{H + i}, 0xffff0000, v{H + i}")
    A.I(f"s_mov_b32 s{sCNT}, 0x10000")
    A.I("Lpoll:")
    A.wait(vmall=True)
    A.I(f"v_max3_u32 v{M}, v{XL}, v{XL+1}, v{XL+2}")
    for i in range(3, 15, 2):
        A.I(f"v_max3_u32 v{M}, v{M}, v{XL+i}, v{XL+i+1}")
    A.I(f"""
    v_max_u32 v{M}, v{M}, v{XL+15}
    v_cmp_eq_u32 vcc, -1, v{M}
    s_sub_u32 s{sCNT}, s{sCNT}, 1
    s_cbranch_scc1 Lpollok
    s_cbranch_vccz Lpollok
    """)
    xloads('xl2')
    A.I("s_branch Lpoll\nLpollok:")
    A.vmq = []
    stamp(A)
    for q in range(4):
        for d in range(4):
            A.I(f"v_dot2_f32_bf16 v{H + 2*d}, v{XL + 4*q + d}, s{sC10}, v{H + 2*d}")
            A.I(f"v_dot2_f32_bf16 v{H + 2*d + 1}, v{XL + 4*q + d}, s{sC01}, v{H + 2*d + 1}")
    T1 = RAW + 32; T2 = RAW + 40
    c1 = 2 * 0.7978845608028654 * 1.4426950408889634; c2 = c1 * 0.044715
    A.I(f"v_mov_b32 v{M}, 0x{f2u(c1):08x}")
    for i in range(8): A.I(f"v_mul_f32 v{T1+i}, v{H+i}, v{H+i}")
    for i in range(8): A.I(f"v_fmamk_f32 v{T1+i}, v{T1+i}, 0x{f2u(c2):08x}, v{M}")
    for i in range(8): A.I(f"v_mul_f32 v{T1+i}, v{T1+i}, v{H+i}")
    for i in range(8): A.I(f"v_exp_f32 v{T1+i}, -v{T1+i}")
    for i in range(8): A.I(f"v_mul_f32 v{T2+i}, v{H+i}, v{W2F+i}")
    for i in range(8): A.I(f"v_add_f32 v{T1+i}, 1.0, v{T1+i}")
    for i in range(8): A.I(f"v_rcp_f32 v{T1+i}, v{T1+i}")
    for i in range(8): A.I(f"v_fmac_f32 v{vP}, v{T1+i}, v{T2+i}")
    A.I(f"""
    v_add_f32_dpp v{vP}, v{vP}, v{vP} row_ror:4 row_mask:0xf bank_mask:0xf
    v_add_f32_dpp v{vP}, v{vP}, v{vP} row_ror:8 row_mask:0xf bank_mask:0xf
    v_mov_b32 v{vP2}, v{vP}
    v_permlane16_swap_b32 v{vP}, v{vP2}
    v_add_f32 v{vP}, v{vP}, v{vP2}
    v_mov_b32 v{vP2}, v{vP}
    v_permlane32_swap_b32 v{vP}, v{vP2}
    v_add_f32 v{vP}, v{vP}, v{vP2}
    v_and_b32 v{M}, 3, v{vLane}
    v_lshlrev_b32 v{M}, 4, v{M}
    s_lshl_b32 s{sT0}, s{sW}, 2
    s_add_u32 s{sT0}, s{sT0}, {L_SCR}
    v_add_u32 v{M+1}, s{sT0}, v{M}
    """)
    A.ds('fin', f"ds_write_b32 v{M+1}, v{vP}")
    A.I(f"v_add_u32 v{M}, {L_SCR}, v{M}")
    A.wait(dsall=True)
    A.I(f"""
    s_barrier
    s_cmp_lg_u32 s{sW}, 0
    s_cbranch_scc1 Ldone
    """)
    A.ds('fin', f"ds_read_b128 {vr(T1)}, v{M}")
    A.I(f"""
    v_lshlrev_b32 v{vB2v}, 16, v{vB2v}
    s_lshr_b32 s{sT0}, s{sXL[0]}, 11
    v_lshlrev_b32 v{M}, 1, v{vLane}
    v_add_u32 v{M}, s{sT0}, v{M}
    """)
    A.wait(dsall=True)
    A.I(f"""
    v_add_f32 v{T1}, v{T1}, v{T1+1}
    v_add_f32 v{T1+2}, v{T1+2}, v{T1+3}
    v_add_f32 v{T1}, v{T1}, v{vB2v}
    v_add_f32 v{T1}, v{T1}, v{T1+2}
    v_cvt_pk_bf16_f32 v{T1}, v{T1}, v{T1}
    s_mov_b64 exec, 15
    global_store_short v{M}, v{T1}, {sp(sOUTP)}
    s_mov_b64 exec, -1
    Ldone:
    """)
    if OPT['stamps'] == 3:
        stamp(A)
        A.I(f"s_waitcnt lgkmcnt(0)\ns_not_b32 s{sST}, s{sST}")
        for i, k in enumerate([0, 2, 3, 5, 6, 8, 9, 10]):
            A.I(f"v_writelane_b32 v{T1}, s{sST+2*k}, {i}")
        A.I(f"""
        v_lshlrev_b32 v{M}, 3, v{vLane}
        s_mov_b64 exec, 0xff
        global_atomic_umax v{M}, v{T1}, {sp(sDBGP)} offset:4 sc1
        """)
    elif OPT['stamps']:
        stamp(A)
        A.I(f"""
        s_waitcnt lgkmcnt(0)
        s_mov_b64 exec, 1
        s_lshl_b32 s{sT0}, s2, 2
        s_add_u32 s{sT0}, s{sT0}, s{sW}
        s_mul_i32 s{sT0}, s{sT0}, {8*nst[0]}
        s_add_u32 s{sT0}, s{sT0}, {8<<20}
        v_mov_b32 v{M}, s{sT0}
        """)
        for i in range(nst[0]):
            A.I(f"v_mov_b32 v{T1}, s{sST+2*i}\nv_mov_b32 v{T1+1}, s{sST+2*i+1}\nglobal_store_dwordx2 v{M}, {vr(T1,2)}, {sp(sWSP)} offset:{8*i}\ns_nop 1")
    A.I("Lend:\ns_endpgm")

def build(WT):
    nst[0] = 0
    A = Asm(); segs = {}
    def seg(name, f, *a):
        st = len(A.L); f(A, *a); segs[name] = A.L[st:]
    seg('pro', prologue)
    for m in range(6):
        seg(f'body{m}', body, m, WT)
        seg(f'side{m}', side, m)
    seg('tail', tail)
    return segs

WT = W(); build(WT); WT.mode = 'emit'; segs = build(WT)
b0 = [i.text for i in segs['body0']]
for m in range(1, 6): assert [i.text for i in segs[f'body{m}']] == b0, m
pro, _ = check(segs['pro'], pad=True)
bodyI = segs['body0']
jump = [Ins(f"s_setpc_b64 {sp(sSJ)}")]
_, v = check(pro + bodyI, label='pro+body'); assert not v, v
sides = []
for m in range(6):
    s = [Ins(f"s_add_u32 s{sSJ}, s{sSJ}, Lside{m+1}-Lside{m}"), Ins(f"s_addc_u32 s{sSJ+1}, s{sSJ+1}, 0")] if m < 5 else []
    s = s + segs[f'side{m}']
    full, _ = check(bodyI + jump + s, pad=True)
    s = full[len(bodyI) + 1:]
    assert [i.text for i in full[:len(bodyI)]] == b0
    if m < 5:
        s = s + [Ins("s_branch Lloop")]
        _, v = check(s + bodyI, label=f'side{m}+body'); assert not v, v
    sides.append(s)
full, _ = check(bodyI + jump + sides[5] + segs['tail'], pad=True)
tailI = full[len(bodyI) + 1 + len(sides[5]):]
def txt(L): return ''.join(('' if i.cls == 'label' else '  ') + i.text + '\n' for i in L)
out = f"""; deep_cross_pnn: split-K MFMA GEMM with LDS-resident table quarter + Gram (PNN) tail
; @launch grid=(256,1,1) block=(256,1,1) lds={L_TOTAL}
.amdgcn_target "amdgcn-amd-amdhsa--gfx950"
.text
.globl {KN}
.p2align 8
.type {KN},@function
{KN}:
"""
out += txt(pro) + "Lloop:\n" + txt(bodyI + jump)
for m in range(6):
    out += f"Lside{m}:\n" + txt(sides[m])
out += txt(tailI)
out += footer(512, 256, 102)
open(sys.argv[1], 'w').write(out)
print("waits:", WT.sites)
print("body instrs", len(bodyI), "pro", len(pro), "tail", len(tailI), "stamps", nst[0])
```

```python
import sys, struct
from asmlib import *
from common import KN, footer

OPT = dict(stamps=0, pnn=1, pollat=55, itst=0, touch=1, tlead=1, ctouch=1, pst=0, bpre=0, itouch=1, abl=0, pabl=0, lagA=2, rA=20, rB=10, gA2=2, slp=0, mask=1, t1w=1, stch=1, tpos=6, defer=1, w1n=2, b1pos=1, tpost=0, tskip=0, sc=0, sc2=6, sc3=6, bar0=0, xtest=0)
for a in sys.argv[2:]:
    k, v = a.split('='); OPT[k] = int(v)

L_TAB = 0
L_IDX = 66560
L_W = 98304
L_E = 122880
L_SCR = 139264
L_TOTAL = 139520
sIDXP, sTABP, sWPP, sW1P, sB1P, sW2P, sB2P, sOUTP, sDBGP, sWSP = 4, 6, 8, 10, 12, 14, 16, 18, 20, 22
rIDX, rTAB, rWP, rW1, rWS = 24, 28, 32, 36, 40
sW, sX, sJ, sQ, sNT, sMT = 44, 45, 46, 47, 48, 49
sB = [50, 51, 52, 53]
sTCH = 54; sIE = 55
sSJ = 56
sEM0 = 58
sT0, sT1, sT2, sT3 = 59, 60, 61, 62
sPO = 63
sXL = [64, 65, 66, 67]
sXS = 68; sCNT = 69; sWM = 68
sC10, sC01 = 54, 55
sTAG = 3
sST = 70
FB = 4194304
def srd(r): return f"s[{r}:{r+3}]"
def sp(r): return f"s[{r}:{r+1}]"
vLane = 1; vB0 = 2; vB1 = 3; vSel = 4; vB0p = 5; vB1p = 6; vG0 = 7; vG1 = 8
vTch = 9; vDum = 10
vCpre = [11, 12, 13, 14]; vEr = [15, 16, 17, 18]; vEoff = 19
vIE = 20
vDma = [24, 25, 26, 27]
vXld = 28; vCnt = 30; vZero = 31; vLc = 29
ACC0 = 32; RAW = 64; BF = 128; EMB = 160; TMP = 192; IDX = 196; ADDR = 204
vIA = [212, 213, 214, 215]
vPois = 216
vT = 228
AE = 96
def vr(b, n=4): return f"v[{b}:{b+n-1}]"
def ar(b, n=4): return f"a[{b}:{b+n-1}]"
def acc(T, d): return vr(ACC0 + 16*T + 4*d) if T < 2 else ar((T - 2)*16 + 4*d)
def raw(slot, t, d=None):
    b = RAW + 16 * slot + 4 * t
    return vr(b) if d is None else f"v{b+d}"
def bf(buf, d, t=None):
    b = BF + 16 * buf + 4 * d
    return vr(b) if t is None else f"v{b+t}"
f2u = lambda x: struct.unpack('<I', struct.pack('<f', x))[0]
nst = [0]
def stamp(A):
    if OPT['stamps']:
        A.I(("s_memrealtime" if OPT['stamps'] >= 2 else "s_memtime") + f" {sp(sST + 2 * nst[0])}")
        nst[0] += 1

def bload(A, n, t, sreg):
    lo, hi = (vB0p, vB1p) if n % 4 == 0 else (vB0, vB1)
    A.vm(('raw', n, t), f"buffer_load_dwordx4 {raw(n & 3, t)}, v{lo if t < 2 else hi}, {srd(rW1)}, s{sreg} offen" + (" offset:2048" if t & 1 else ""))
def xf_dpp(n, t, d): return f"v_mov_b32_dpp v{TMP+d}, {raw(n & 3, t, d)} row_ror:8 row_mask:0xf bank_mask:0xf"
def xf_perm(n, t, d): return f"v_perm_b32 {bf(n & 1, d, t)}, v{TMP+d}, {raw(n & 3, t, d)}, v{vSel}"
def embread(A, n, T):
    A.ds(('emb', n, T), f"ds_read_b128 {vr(EMB + 4*T)}, v{ADDR + T}" + (" offset:32" if n & 1 else ""))
def addr_op(T, word):
    return f"v_add_u32_sdwa v{ADDR+T}, v{IDX+T}, v{vG1 if word else vG0} dst_sel:DWORD dst_unused:UNUSED_PAD src0_sel:WORD_{word} src1_sel:DWORD"
def idxread(A, m, T):
    A.ds(('idx', m, T), f"ds_read_b32 v{IDX+T}, v{vIA[T >> 1]}" + (" offset:3200" if T & 1 else ""))
def mfma(n, T, d):
    return f"v_mfma_f32_16x16x32_bf16 {acc(T, d)}, {bf(n & 1, d)}, {vr(EMB + 4*T)}, {acc(T, d)}"
def touch(A):
    if OPT['touch']:
        A.vm('tch', f"buffer_load_dword v{vDum}, v{vTch}, {srd(rW1)}, s{sTCH} offen")
def ieload(A, m):
    A.vm(('ie', m), f"buffer_load_dwordx4 {vr(vIE)}, v{vEoff}, {srd(rIDX)}, s{sIE} offen")

class W:
    def __init__(self): self.sites = {}; self.mode = 'rec'
    def __call__(self, A, site, **kw):
        if self.mode == 'rec':
            nv, nd = A.wait(**kw)
            o = self.sites.get(site, (None, None))
            mn = lambda a, b: b if a is None else (a if b is None else min(a, b))
            self.sites[site] = (mn(o[0], nv), mn(o[1], nd))
        else:
            A.wait(force=self.sites[site], **kw)

FSTEP = 16 * 131072
def body(A, m, WT):
    st = len(A.L)
    body_(A, m, WT)
    ab = OPT['abl']
    def keep(i):
        t = i.text
        if ab & 1 and t.startswith('buffer_load_dwordx4') and srd(rW1) in t: return False
        if ab & 2 and t.startswith('ds_read_b128'): return False
        if ab & 4 and (t.startswith('v_mov_b32_dpp') or t.startswith('v_perm')): return False
        if ab & 8 and t.endswith(' lds'): return False
        if ab & 16 and t.startswith('buffer_load_dword v'): return False
        if ab & 32 and t.startswith('buffer_store'): return False
        return True
    A.L[st:] = [i for i in A.L[st:] if keep(i)]
def body_(A, m, WT):
    for e in range(4):
        n = 4 * m + e
        for g in range(32):
            T, d = g >> 2, g & 3
            t, ph = g >> 3, g & 7
            A.I(mfma(n, T, d))
            dma = {(0, 1): 0, (0, 2): 1, (0, 3): 2, (1, 0): 3}.get((e, t))
            if ph == 0:
                A.I(xf_dpp(n + 1, t, 0)); A.I(xf_dpp(n + 1, t, 1))
            elif ph == 1:
                A.I(xf_dpp(n + 1, t, 2)); A.I(xf_dpp(n + 1, t, 3))
            elif ph == 2:
                A.I(xf_perm(n + 1, t, 0)); A.I(xf_perm(n + 1, t, 1))
                if OPT['defer'] and e == 0: bload(A, n + 4, t, sB[3])
            elif ph == 3:
                embread(A, n + 1, T); A.I(xf_perm(n + 1, t, 2))
            elif ph == 4:
                A.I(xf_perm(n + 1, t, 3))
                A.I(addr_op(t + 4 * (e & 1), 1 if e < 2 else 0))
            elif ph == 5:
                if not (OPT['defer'] and e == 3): bload(A, n + 5, t, sB[e])
                if dma is not None:
                    A.I(f"s_mov_b32 m0, s{sEM0}" if dma == 0 else "s_add_u32 m0, m0, 1024")
                elif t == 3: A.I(f"s_add_u32 s{sB[e]}, s{sB[e]}, {FSTEP}")
            elif ph == 6:
                if dma is not None:
                    A.vm(('dma', m, dma), f"buffer_load_dwordx4 v{vDma[dma]}, {srd(rTAB)}, 0 offen lds")
                    if t == 3: A.I(f"s_add_u32 s{sB[e]}, s{sB[e]}, {FSTEP}")
                if e == 0 and t == 0:
                    A.vm(('pois', m), f"buffer_store_dwordx4 {vr(vPois)}, v{vXld}, {srd(rWS)}, s{sPO} offen sc1")
                if e in (1, 2): idxread(A, m + 1, t + 4 * (e - 1))
                if e == 1 and t in (1, 3): A.I(f"v_add_u32 v{vIA[t >> 1]}, 32, v{vIA[t >> 1]}")
                if e == 2 and t in (1, 3): A.I(f"v_add_u32 v{vIA[2 + (t >> 1)]}, 32, v{vIA[2 + (t >> 1)]}")
                if e == 1 and t == 2: A.I(f"s_add_u32 s{sPO}, s{sPO}, 4096")
                if 4 * e + t == (OPT['tpos'] + 9) % 16: A.I(f"s_add_u32 s{sTCH}, s{sTCH}, {FSTEP}")
                if 4 * e + t == OPT['tpos']: touch(A)
                if e == 3:
                    if t < 2:
                        for i in (2 * t, 2 * t + 1):
                            A.I(f"v_lshl_add_u32 v{vDma[i]}, v{vIE+i}, 8, v{vCpre[i]}")
                    if t == 2:
                        ieload(A, m + 2); A.I(f"s_add_u32 s{sIE}, s{sIE}, 64")
            else:
                embread(A, n + 1, T)
                dst = []; vmt = []
                if t < 3:
                    dst += [('emb', n, 2*t+2), ('emb', n, 2*t+3)]; vmt += [('raw', n + 1, t + 1)]
                    if e >= 2: dst += [('idx', m + 1, t + 1 + 4 * (e - 2))]
                else:
                    dst += [('emb', n + 1, 0), ('emb', n + 1, 1)]; vmt += [('raw', n + 2, 0)]
                    if e in (1, 2): dst += [('idx', m + 1, 4 * (e - 1))]
                if e == 0 and t == 0: dst += [('eread', m - 1)]
                if e == 2 and t == 3: vmt += [('ie', m + 1)]
                if e == 3 and t == 3: vmt += [('dma', m, 3)]
                WT(A, ('g', e, t), ds=dst, vm=vmt)

def side(A, m):
    if OPT['itst'] and m < 5: stamp(A)
    for ks in range(4):
        A.ds(('eread', m), f"ds_read_b128 {ar(AE + 16*m + 4*ks)}, v{vEr[ks]}")
    A.I(f"s_mov_b32 m0, s{sWM}")
    A.I(f"s_add_u32 s{sWM}, s{sWM}, 1024")
    A.vm('wdma', f"buffer_load_dwordx4 v{vT+9}, {srd(rWP)}, 0 offen lds")
    if m < 5: A.I(f"v_add_u32 v{vT+9}, 1024, v{vT+9}")
    if m == 1:
        for h in range(2):
            A.ds('p24', f"ds_read_u16 v{vT+6+h}, v{vT+10} offset:{192 + 12800*h}")
    if m == 2:
        assert 'p24' not in A.dsq
        for h in range(2):
            A.ds('p24w', f"ds_write_b32 v{vT+11}, v{vT+6+h} offset:{12800*h}")
    if m == 3 + OPT['defer']:
        A.I(f"s_mul_i32 s{sT0}, s{sW}, {3*131072}")
        A.I(f"s_sub_u32 s{sB[3]}, s{sB[3]}, s{sT0}")
        A.I(f"v_mov_b32 v{vB0p}, v{vT+3}")
        A.I(f"v_add_u32 v{vB1p}, 4096, v{vT+3}")
    if m == 3:
        A.I(f"s_mov_b32 s{sPO}, 0x7ff00000")
        assert not any(isinstance(x, tuple) and x[0] == 'pois' for x in A.vmq), A.vmq
        A.I(f"v_mov_b32 v{vT+1}, s{sTAG}")
        A.I("s_mov_b64 exec, 1")
        A.vm('flag', f"buffer_store_dword v{vT+1}, v{vT}, {srd(rWS)}, 0 offen sc1")
        A.I("s_mov_b64 exec, -1")
    if m == 4:
        for i in range(4):
            A.I(f"v_sub_u32 v{vIA[i]}, v{vIA[i]}, v{vT+5}")
        A.I(f"v_and_b32 v{vG0}, 48, v{vLane}")

def prologue(A):
    sFI, sIC, sIB, sIW = 65, 66, 67, 69
    IC = BF
    A.I(f"""
    s_cmp_ge_u32 s2, 256
    s_cbranch_scc1 Lend
    """)
    stamp(A)
    A.I(f"""
    s_load_dwordx16 s[4:19], s[0:1], 0
    s_load_dwordx4 s[20:23], s[0:1], 64
    s_getpc_b64 {sp(sSJ)}
    Lpcref:
    v_lshrrev_b32 v{vT}, 6, v0
    s_lshr_b32 s{sJ}, s2, 3
    s_lshl_b32 s{sT0}, s{sJ}, 2
    v_readfirstlane_b32 s{sW}, v{vT}
    """)
    if OPT['ctouch']:
        A.I(f"""
        v_add_lshl_u32 v{vT}, v{vT}, s{sT0}, 7
        v_min_u32 v{vT}, Lend-Lpcref, v{vT}
        """)
        A.vm('tch', f"global_load_dword v{vDum}, v{vT}, {sp(sSJ)}")
    A.I(f"""
    v_and_b32 v{vLane}, 63, v0
    s_and_b32 s{sX}, s2, 7
    s_lshr_b32 s{sQ}, s{sX}, 1
    s_and_b32 s{sT2}, s{sX}, 1
    s_lshl_b32 s{sNT}, s{sT2}, 2
    s_lshr_b32 s{sIC}, s{sJ}, 3
    s_add_u32 s{sNT}, s{sNT}, s{sIC}
    s_and_b32 s{sMT}, s{sJ}, 7
    s_add_u32 s{sSJ}, s{sSJ}, Lside0-Lpcref
    s_addc_u32 s{sSJ+1}, s{sSJ+1}, 0
    s_add_u32 s{sT0}, s{sT0}, s{sW}
    s_mul_i32 s{sIW}, s{sIC}, {3*2048}
    s_mul_i32 s{sIC}, s{sIC}, {3*4096}
    s_mul_i32 s{sIB}, s{sMT}, 51200
    s_lshl_b32 s{sFI}, s{sJ}, 1
    s_add_u32 s{sFI}, s{sFI}, s{sW}
    v_lshlrev_b32 v{vXld}, 4, v0
    """)
    A.I(f"""
    s_lshl_b32 s{sTCH}, s{sT2}, 9
    s_lshl_b32 s{sT1}, s{sQ}, 15
    s_add_u32 s{sTCH}, s{sTCH}, s{sT1}
    s_lshl_b32 s{sT2}, s{sNT}, 7
    s_add_u32 s{sT1}, s{sT1}, s{sT2}
    s_lshl_b32 s{sT2}, s{sW}, 19
    s_add_u32 s{sB[3]}, s{sT1}, s{sT2}
    s_lshr_b32 s{sT1}, s{sJ}, 1
    s_lshl_b32 s{sT1}, s{sT1}, 17
    s_add_u32 s{sTCH}, s{sTCH}, s{sT1}
    s_and_b32 s{sT1}, s{sJ}, 1
    s_lshl_b32 s{sT1}, s{sT1}, 14
    s_add_u32 s{sTCH}, s{sTCH}, s{sT1}
    v_lshrrev_b32 v{vT}, 2, v{vLane}
    v_and_b32 v{vT+6}, 3, v{vLane}
    v_lshlrev_b32 v{vT+1}, 7, v{vT+6}
    v_lshl_add_u32 v{vTch}, v{vT}, 10, v{vT+1}
    s_cmp_lt_u32 s{sW}, {OPT['w1n']}
    s_cselect_b32 s{sT1}, 21, 30
    s_lshl_b32 s{sT1}, s{sW}, s{sT1}
    v_add_u32 v{vT+7}, s{sT1}, v{vTch}
    s_lshl_b32 s{sT1}, s{sW}, 30
    v_add_u32 v{vTch}, s{sT1}, v{vTch}
    v_lshlrev_b32 v{vT+8}, 8, v{vT}
    v_lshl_add_u32 v{vT+8}, v{vT+6}, 4, v{vT+8}
    s_lshl_b32 s{sT1}, s{sQ}, 6
    v_add_u32 v{vT+8}, s{sT1}, v{vT+8}
    v_lshrrev_b32 v{vT+10}, 3, v{vLane}
    v_lshlrev_b32 v{vT+10}, 8, v{vT+10}
    s_xor_b32 s{sT1}, s{sT1}, 0x80
    s_lshl_b32 s{sT2}, s{sT0}, 11
    s_add_u32 s{sT2}, s{sT2}, s{sT1}
    s_lshl_b32 s{sTAG}, s{sMT}, 7
    s_add_u32 s{sTAG}, s{sTAG}, {FB + 4096}
    """)
    for r, size in ((rIDX, 409600), (rTAB, 256000), (rW1, 13107200), (rWP, 20000), (rWS, FB + 8192)):
        A.I(f"s_mov_b32 s{r+2}, {size}\ns_mov_b32 s{r+3}, 0x20000")
    A.I(f"""
    v_bfe_u32 v{vT}, v{vLane}, 4, 1
    v_bfe_u32 v{vT+1}, v{vLane}, 3, 1
    v_lshl_add_u32 v{vT}, v{vT}, 3, v{vT+1}
    v_and_b32 v{vT+2}, 7, v{vLane}
    v_lshlrev_b32 v{vT+2}, 4, v{vT+2}
    v_lshl_add_u32 v{vT}, v{vT}, 10, v{vT+2}
    v_lshrrev_b32 v{vT+2}, 5, v{vLane}
    v_lshl_add_u32 v{vB0}, v{vT+2}, 18, v{vT}
    v_lshl_add_u32 v{vT+3}, v{vT+2}, 14, v{vT}
    v_add_u32 v{vB1}, 4096, v{vB0}
    v_mov_b32 v{vB0p}, v{vB0}
    v_mov_b32 v{vB1p}, v{vB1}
    v_mov_b32 v{vSel}, 0x05040100
    v_mov_b32 v{vT+6}, 0x03020706
    v_cmp_eq_u32 vcc, 1, v{vT+1}
    s_add_u32 s{sB[0]}, s{sB[3]}, 16384
    s_add_u32 s{sB[1]}, s{sB[3]}, 131072
    v_cndmask_b32 v{vSel}, v{vSel}, v{vT+6}, vcc
    s_add_u32 s{sB[2]}, s{sB[3]}, {131072 + 16384}
    v_mov_b32 v{vZero}, 0
    s_add_u32 s{sT3}, s{sIB}, s{sIC}
    s_and_b32 s{sFI}, s{sFI}, 63
    s_mul_i32 m0, s{sFI}, 1040
    s_lshl_b32 s{sT1}, s{sFI}, 12
    s_waitcnt lgkmcnt(0)
    """)
    def ptr(r, p): A.I(f"s_mov_b32 s{r}, s{p}\ns_mov_b32 s{r+1}, s{p+1}")
    def icload(k):
        A.vm(('ic', k), f"buffer_load_dwordx4 {vr(IC + 4*k)}, v{vXld}, {srd(rIDX)}, s{sT3} offen")
        if k < 12: A.I(f"""
        s_add_u32 s{sIC}, s{sIC}, 4096
        s_cmp_eq_u32 s{sIC}, {13*4096}
        s_cselect_b32 s{sIC}, 0, s{sIC}
        s_add_u32 s{sT3}, s{sIB}, s{sIC}
        """)
    def fill(i):
        if i: A.I(f"""
        s_add_u32 s{sFI}, s{sFI}, 4
        s_and_b32 s{sFI}, s{sFI}, 63
        s_mul_i32 m0, s{sFI}, 1040
        s_lshl_b32 s{sT1}, s{sFI}, 12
        """)
        A.vm('fill', f"buffer_load_dwordx4 v{vT+8}, {srd(rTAB)}, s{sT1} offen lds")
    def conv(k):
        A.wait(vm=[('ic', k)])
        if OPT['pst'] and k in (0, 6): stamp(A)
        b = IC + 4 * k
        A.I(f"""
        v_perm_b32 v{b}, v{b+1}, v{b}, v{vT+14}
        v_perm_b32 v{b+1}, v{b+3}, v{b+2}, v{vT+14}
        v_add_u32 v{b+2}, s{sIW}, v{vT+12}
        v_pk_mul_lo_u16 v{b}, v{b}, v{vT+13}
        v_pk_mul_lo_u16 v{b+1}, v{b+1}, v{vT+13}
        s_add_u32 s{sIW}, s{sIW}, 2048
        v_and_b32 v{b}, 0xfff0fff0, v{b}
        s_cmp_eq_u32 s{sIW}, {13*2048}
        v_and_b32 v{b+1}, 0xfff0fff0, v{b+1}
        s_cselect_b32 s{sIW}, 0, s{sIW}
        """)
        A.ds('icw', f"ds_write_b64 v{b+2}, {vr(b, 2)}")
    ptr(rIDX, sIDXP); icload(0)
    ptr(rTAB, sTABP); fill(0)
    ptr(rW1, sW1P)
    if OPT['touch']: A.vm('tch', f"buffer_load_dword v{vDum}, v{vT+7}, {srd(rW1)}, s{sTCH} offen")
    icload(1); icload(2)
    if OPT['itouch']: A.vm('tch', f"buffer_load_dword v{vDum}, v{vT+10}, {srd(rTAB)}, s{sT2} offen")
    A.vm('b2', f"global_load_ushort v224, v{vZero}, {sp(sB2P)}")
    stamp(A)
    ptr(rWP, sWPP); ptr(rWS, sWSP)
    sSA, sSB, sSC = 98, 99, 100
    SL = []
    if OPT['sc']:
        SL += [f"s_buffer_load_dwordx2 s[96:97], {srd(rW1)}, s{sSC} offset:{(i >> 2)*1024 + (i & 3)*128 + 60}" for i in range(16)]
    SL += [f"s_load_dword s{sTAG}, {sp(sWSP)}, s{sTAG}",
           f"s_buffer_load_dwordx2 s[96:97], {srd(rWP)}, s{sSA} offset:60",
           f"s_buffer_load_dwordx2 s[96:97], {srd(rWP)}, s{sSA} offset:{16384+60}",
           f"s_load_dwordx2 s[96:97], {sp(sB1P)}, s{sSB} offset:60",
           f"s_load_dwordx2 s[96:97], {sp(sW2P)}, s{sSB} offset:60"]
    def sbatch(k=7):
        for _ in range(k):
            if SL: A.I(SL.pop(0))
    A.I(f"""
    s_add_u32 s{sTCH}, s{sTCH}, {FSTEP * OPT['w1n']}
    s_lshl_b32 s{sSC}, s{sW}, 12
    s_add_u32 s{sSC}, s{sSC}, s{sTCH}
    s_lshl_b32 s{sSA}, s{sT0}, 7
    s_and_b32 s{sSB}, s{sSA}, 0x380
    """)
    sbatch()
    A.I(f"""
    v_mov_b32 v{TMP}, 0
    v_mov_b32 v{TMP+1}, 0
    v_mov_b32 v{TMP+2}, 0
    v_mov_b32 v{TMP+3}, 0
    v_lshlrev_b32 v{vT+12}, 3, v0
    v_add_u32 v{vT+12}, {L_IDX}, v{vT+12}
    v_mov_b32 v{vT+13}, 0x00410041
    v_mov_b32 v{vT+14}, 0x05040100
    """)
    for i in range(2): A.I(f"v_mfma_f32_32x32x16_bf16 {vr(ACC0 + 16*i, 16)}, {vr(TMP)}, {vr(TMP)}, 0")
    for i in range(6): A.I(f"v_mfma_f32_32x32x16_bf16 {ar(16*i, 16)}, {vr(TMP)}, {vr(TMP)}, 0")
    A.I(f"""
    v_and_b32 v{vT+1}, 15, v{vLane}
    v_mul_u32_u24 v{vT}, 200, v{vT+1}
    v_lshrrev_b32 v{vT+2}, 5, v{vLane}
    v_lshlrev_b32 v{vT+5}, 2, v{vT+2}
    v_add_u32 v{vT}, v{vT}, v{vT+5}
    s_lshl_b32 s{sT0}, s{sW}, 3
    s_add_u32 s{sT0}, s{sT0}, {L_IDX}
    v_add_u32 v{vT+5}, 192, v{vT+5}
    v_mul_u32_u24 v{vT+11}, 200, v{vLane}
    v_add_u32 v{vT+11}, s{sT0}, v{vT+11}
    s_mul_i32 s{sT2}, s{sW}, 6
    v_subrev_u32 v{vT+10}, s{sT2}, v{vT+11}
    s_mul_i32 s{sT2}, s{sW}, 6144
    s_add_u32 s{sWM}, s{sT2}, {L_W}
    v_lshlrev_b32 v{vT+9}, 4, v{vLane}
    v_add_u32 v{vT+9}, s{sT2}, v{vT+9}
    v_and_b32 v{vG0}, 16, v{vLane}
    v_and_b32 v{vG1}, 16, v{vLane}
    """)
    for i in range(4):
        A.I(f"""
        s_add_u32 s{sT2}, s{sW}, {i}
        s_and_b32 s{sT2}, s{sT2}, 3
        s_mul_i32 s{sT2}, s{sT2}, 6400
        s_add_u32 s{sT2}, s{sT2}, s{sT0}
        v_add_u32 v{vIA[i]}, s{sT2}, v{vT}
        """)
    A.I(f"""
    s_lshl_b32 s{sT0}, s{sNT}, 2
    s_add_u32 s{sT0}, s{sT0}, s{sQ}
    s_lshl_b32 s{sT2}, s{sMT}, 5
    s_add_u32 s{sT2}, s{sT2}, s{sT0}
    s_lshl_b32 s{sXL[0]}, s{sT2}, 14
    s_mov_b32 s{sPO}, s{sXL[0]}
    s_lshl_b32 s{sT2}, s{sT2}, 2
    s_add_u32 s{sT2}, s{sT2}, s{sW}
    s_mul_i32 s{sIE}, s{sT2}, 400
    v_and_b32 v{vEoff}, 48, v{vLane}
    s_lshl_b32 s{sEM0}, s{sW}, 12
    s_add_u32 s{sEM0}, s{sEM0}, {L_E}
    v_lshrrev_b32 v{vT+2}, 2, v{vEoff}
    v_xor_b32 v{vT+2}, v{vT+2}, v{vT+1}
    v_lshlrev_b32 v{vCpre[0]}, 4, v{vT+2}
    v_xor_b32 v{vCpre[1]}, 16, v{vCpre[0]}
    v_xor_b32 v{vCpre[2]}, 32, v{vCpre[0]}
    v_xor_b32 v{vCpre[3]}, 48, v{vCpre[0]}
    v_lshrrev_b32 v{vT+2}, 4, v{vLane}
    v_xor_b32 v{vT+2}, v{vT+2}, v{vT+1}
    v_lshlrev_b32 v{vT+2}, 4, v{vT+2}
    v_and_b32 v{vT+6}, 3, v{vLane}
    v_lshl_add_u32 v{vT+2}, v{vT+6}, 10, v{vT+2}
    v_lshrrev_b32 v{vT+6}, 2, v{vT+1}
    v_lshl_add_u32 v{vT+2}, v{vT+6}, 8, v{vT+2}
    v_add_u32 v{vEr[0]}, s{sEM0}, v{vT+2}
    v_xor_b32 v{vEr[1]}, 64, v{vEr[0]}
    v_xor_b32 v{vEr[2]}, 0x80, v{vEr[0]}
    v_xor_b32 v{vEr[3]}, 0xc0, v{vEr[0]}
    v_mov_b32 v{vPois}, -1
    v_mov_b32 v{vPois+1}, -1
    v_mov_b32 v{vPois+2}, -1
    v_mov_b32 v{vPois+3}, -1
    s_lshr_b32 s{sT0}, s{sXL[0]}, 10
    s_lshl_b32 s{sT2}, s{sW}, 2
    s_add_u32 s{sT0}, s{sT0}, s{sT2}
    s_add_u32 s{sT0}, s{sT0}, {FB}
    v_mov_b32 v{vT}, s{sT0}
    s_lshl_b32 s{sT0}, s{sMT}, 9
    s_lshl_b32 s{sT2}, s{sW}, 7
    s_add_u32 s{sT2}, s{sT2}, s{sT0}
    s_add_u32 s{sT2}, s{sT2}, {FB}
    v_and_b32 v{vT+2}, 31, v{vLane}
    v_lshlrev_b32 v{vT+2}, 2, v{vT+2}
    v_add_u32 v{vT+2}, s{sT2}, v{vT+2}
    """)
    if OPT['pst']: stamp(A)
    for k in range(3, 13):
        if k == OPT['sc2']: sbatch()
        icload(k)
    for t in range(4): bload(A, 0, t, sB[3])
    ieload(A, 0); A.I(f"s_add_u32 s{sIE}, s{sIE}, 64")
    if OPT['b1pos'] == 0:
        for t in range(4): bload(A, 1, t, sB[0])
    for i in range(1, 16):
        if i == OPT['sc3']: sbatch()
        if i <= 13: conv(i - 1)
        fill(i)
    if OPT['b1pos'] == 1:
        for t in range(4): bload(A, 1, t, sB[0])
    if OPT['bar0'] & 2:
        for t in range(4): bload(A, 2, t, sB[1])
    if OPT['bar0']:
        A.I("s_barrier")
        touch(A); A.I(f"s_add_u32 s{sTCH}, s{sTCH}, {FSTEP}")
    stamp(A)
    assert not SL
    assert A.wait(ds=['icw'], vm=[('raw', 0, 3), ('ie', 0)])[1] == 0
    A.I(f"s_add_u32 s{sTAG}, s{sTAG}, 0x9E3779B9")
    for t in range(4):
        for d in range(4): A.I(xf_dpp(0, t, d))
        for d in range(4): A.I(xf_perm(0, t, d))
    for i in range(4):
        A.I(f"v_lshl_add_u32 v{vDma[i]}, v{vIE+i}, 8, v{vCpre[i]}")
    A.I(f"s_add_u32 s{sB[3]}, s{sB[3]}, {FSTEP}")
    if OPT['pst']: stamp(A)
    A.wait(vm=['fill'])
    if OPT['pst']: stamp(A)
    A.I("s_barrier")
    stamp(A)
    if OPT['b1pos'] == 2:
        for t in range(4): bload(A, 1, t, sB[0])
    for T in range(8): idxread(A, 0, T)
    if not OPT['bar0'] & 2:
        for t in range(4): bload(A, 2, t, sB[1])
    for T in range(8):
        if T % 4 == 0: A.wait(ds=[('idx', 0, T + 3)])
        A.I(addr_op(T, 0))
        embread(A, 0, T)
    for i in range(4): A.I(f"v_add_u32 v{vIA[i]}, 32, v{vIA[i]}")
    for t in range(4): bload(A, 3, t, sB[2])
    ieload(A, 1); A.I(f"s_add_u32 s{sIE}, s{sIE}, 64")
    for _ in range(OPT['tpost']):
        touch(A); A.I(f"s_add_u32 s{sTCH}, s{sTCH}, {FSTEP}")
    A.I(f"s_add_u32 s{sB[0]}, s{sB[0]}, {FSTEP}\ns_add_u32 s{sB[1]}, s{sB[1]}, {FSTEP}\ns_add_u32 s{sB[2]}, s{sB[2]}, {FSTEP}")
    if OPT['tskip']: A.I(f"s_add_u32 s{sTCH}, s{sTCH}, {FSTEP * OPT['tskip']}")
    assert OPT['defer'] and OPT['tpos'] < 7
    A.wait(ds=[('emb', 0, 0), ('emb', 0, 1)], vm=[('raw', 1, 0)])
    stamp(A)

def tail(A):
    n = 24
    stamp(A)
    vImg = [vT + 8, vT + 9, vT + 10]; vImgR = vT + 7
    HB = IDX; W2F = ADDR
    vB2v = 224; vT6 = vT + 12; M = vT + 13; vXst = vT + 14
    vP = vT + 16; vP2 = vT + 17; vWt = vT + 18; vWn = vT + 19; vOut = vT + 20; vSh = vT + 21
    PK = 72; G = BF + 16; ST = EMB; XL = BF; SEL = 212; DP = 220
    H = 64; T1 = 176; T2 = 184
    sM1, sM2, sMc = 50, 52, 54
    sXS4 = [sXS, sT1, sT2, sT3]
    off5 = [(t, u) for u in range(6) for t in range(u)]; dg5 = [(u, u) for u in range(6)]
    slots = dg5 + off5 + [(6, 6)] + [(t, 6) for t in range(6)]
    slot = {x: i for i, x in enumerate(slots)}
    last = off5[-1]
    comp = [(t, u) for u in range(6) for t in range(u + 1) if (t, u) != last] + [last, (6, 6)] + [(t, 6) for t in range(6)]
    GS = []
    def cvts(i):
        g = G + 4 * (i & 3); pk = PK + 2 * slot[comp[i]]
        return [('v', f"v_cvt_pk_bf16_f32 v{pk}, v{g}, v{g+1}"), ('v', f"v_cvt_pk_bf16_f32 v{pk+1}, v{g+2}, v{g+3}")]
    for p in range(14):
        if p == 10: GS.append(('t6',))
        for k in range(8):
            i = 2 * p + (k & 1); ks = k >> 1; t, u = comp[i]; g = G + 4 * (i & 3)
            GS.append(('m', f"v_mfma_f32_16x16x32_bf16 {vr(g)}, {ar(AE + 16*t + 4*ks)}, {ar(AE + 16*u + 4*ks)}, " + ("0" if ks == 0 else vr(g))))
            if p >= 1 and k in (4, 6): GS += cvts(2 * p - 2 + (k == 6))
    GS += cvts(26) + cvts(27)
    def gram(k, t6ok=False):
        while k > 0 and GS:
            x = GS[0]
            if x[0] == 't6':
                if not t6ok: return
                A.wait(vm=['t6']); GS.pop(0); continue
            A.I(GS.pop(0)[1])
            if x[0] == 'm': k -= 1
            while GS and GS[0][0] == 'v' and len(GS) > 4: A.I(GS.pop(0)[1])
    A.vm('cnt', f"buffer_load_dword v{vCnt}, v{vT+2}, {srd(rWS)}, 0 offen sc1")
    pre = f"""
    v_and_b32 v{M}, 3, v{vLane}
    v_lshlrev_b32 v{M}, 2, v{M}
    s_sub_u32 s{sIE}, s{sIE}, 128
    VM:t6i buffer_load_dword v{vT6}, v{M}, {srd(rIDX)}, s{sIE} offen
    v_lshlrev_b32 v{vImgR}, 4, v{vLane}
    """
    for tau in (1, 2, 3):
        pre += f"""
        s_add_u32 s{sT0}, s{sW}, {tau}
        s_and_b32 s{sT0}, s{sT0}, 3
        s_mul_i32 s{sT0}, s{sT0}, 24576
        s_add_u32 s{sT0}, s{sT0}, {(tau-1)*8192}
        v_add_u32 v{vImg[tau-1]}, s{sT0}, v{vImgR}
        """
    pre += f"""
    s_mul_i32 s{sT0}, s{sW}, 24576
    v_add_u32 v{vImgR}, s{sT0}, v{vImgR}
    v_lshrrev_b32 v{M}, 3, v{vLane}
    v_lshlrev_b32 v{M}, 7, v{M}
    v_and_b32 v{vT+15}, 1, v{vLane}
    v_lshl_add_u32 v{M}, v{vT+15}, 6, v{M}
    v_bfe_u32 v{vT+15}, v{vLane}, 2, 1
    v_lshl_add_u32 v{M}, v{vT+15}, 5, v{M}
    VM:misc global_load_dwordx4 {vr(HB)}, v{M}, {sp(sB1P)}
    VM:misc global_load_dwordx4 {vr(HB+4)}, v{M}, {sp(sB1P)} offset:16
    VM:misc global_load_dwordx4 {vr(W2F)}, v{M}, {sp(sW2P)}
    VM:misc global_load_dwordx4 {vr(W2F+4)}, v{M}, {sp(sW2P)} offset:16
    v_lshlrev_b32 v{vXst}, 14, v{vT+15}
    v_and_b32 v{vT+15}, 48, v{vLane}
    v_add_u32 v{vXst}, v{vT+15}, v{vXst}
    v_and_b32 v{vT+15}, 3, v{vLane}
    v_lshl_add_u32 v{vXst}, v{vT+15}, 10, v{vXst}
    v_and_b32 v{vT+15}, 8, v{vLane}
    v_lshl_add_u32 v{vXst}, v{vT+15}, 3, v{vXst}
    s_lshl_b32 s{sXS}, s{sMT}, 2
    s_add_u32 s{sXS}, s{sXS}, s{sW}
    s_lshl_b32 s{sXS}, s{sXS}, 17
    s_lshl_b32 s{sT0}, s{sQ}, 12
    s_add_u32 s{sXS}, s{sXS}, s{sT0}
    s_lshl_b32 s{sT0}, s{sNT}, 7
    s_add_u32 s{sXS}, s{sXS}, s{sT0}
    s_add_u32 s{sT1}, s{sXS}, 32768
    s_add_u32 s{sT2}, s{sXS}, 65536
    s_add_u32 s{sT3}, s{sXS}, 98304
    s_add_u32 s{sXL[1]}, s{sXL[0]}, 4096
    s_add_u32 s{sXL[2]}, s{sXL[0]}, 8192
    s_add_u32 s{sXL[3]}, s{sXL[0]}, 12288
    WAIT:t6i
    v_lshl_add_u32 v{vT6}, v{vT6}, 8, v{vEoff}
    s_mov_b32 vcc_lo, 0xfff0fff0
    s_mov_b32 vcc_hi, 0xfff0fff0
    v_mov_b32 v{vT+15}, 0x7fff0000
    s_mov_b32 s{sCNT}, 0x10000
    v_cndmask_b32 v{vT6}, v{vT6}, v{vT+15}, vcc
    VM:t6 buffer_load_dwordx4 {ar(AE + 96)}, v{vT6}, {srd(rTAB)}, 0 offen
    VM:t6 buffer_load_dwordx4 {ar(AE + 100)}, v{vT6}, {srd(rTAB)}, 0 offen offset:64
    VM:t6 buffer_load_dwordx4 {ar(AE + 104)}, v{vT6}, {srd(rTAB)}, 0 offen offset:128
    VM:t6 buffer_load_dwordx4 {ar(AE + 108)}, v{vT6}, {srd(rTAB)}, 0 offen offset:192
    v_and_b32 v{M}, 15, v{vLane}
    v_lshrrev_b32 v{vT+15}, 4, v{vLane}
    v_mul_u32_u24 v{vWt}, 200, v{M}
    v_lshl_add_u32 v{vWt}, v{vT+15}, 3, v{vWt}
    v_add_u32 v{vWt}, {L_W}, v{vWt}
    v_lshrrev_b32 v{M}, 2, v{vLane}
    v_mul_u32_u24 v{vWn}, 200, v{M}
    v_and_b32 v{M}, 3, v{vLane}
    v_lshl_add_u32 v{vWn}, v{M}, 3, v{vWn}
    v_add_u32 v{vWn}, {L_W}, v{vWn}
    """
    extra = [x.strip() for x in pre.split('\n') if x.strip()]
    def emit(L, k):
        for _ in range(k):
            if L:
                x = L.pop(0)
                if x.startswith('VM:'):
                    tg, x = x[3:].split(' ', 1); A.vm(tg, x)
                elif x.startswith('DS:'):
                    tg, x = x[3:].split(' ', 1); A.ds(tg, x)
                elif x.startswith('WAIT:'): A.wait(vm=[x[5:]])
                else: A.I(x)
    peel = [(T, d) for T in range(2, 8) for d in range(4)]
    own = [(T, d) for T in range(2) for d in range(4)]
    wr = [f"ds_write_b128 v{vImg[(T-2) >> 1]}, {acc(T, d)} offset:{1024*(4*(T&1) + d)}" for T, d in peel]
    ra = 0
    for k in range(24 + OPT['lagA']):
        if k < 24:
            if peel[k][1] == 0: A.wait(ds=[('emb', n, peel[k][0])])
            A.I(mfma(n, *peel[k]))
        emit(extra, 5 if k < 2 else 1)
        ra += OPT['rA'] + (10 if k >= 24 else 0)
        while ra >= 10:
            ra -= 10
            if own: A.I(mfma(n, *own.pop(0)))
            else: gram(1)
            emit(extra, 3 if k < 2 else 1)
        if k == OPT['lagA']:
            A.wait(dsall=True, vm=[x for x in A.vmq if isinstance(x, tuple) and x[0] == 'raw']); A.I("s_barrier")
        if k >= OPT['lagA']: A.ds('imgw', wr.pop(0))
    assert not own and not wr
    emit(extra, 99)
    A.wait(vm=['cnt', 'wdma'])
    A.I(f"""
    Lchk:
    v_cmp_ne_u32 vcc, s{sTAG}, v{vCnt}
    s_cbranch_vccz Lchkok
    buffer_load_dword v{vCnt}, v{vT+2}, {srd(rWS)}, 0 offen sc1
    s_sub_u32 s{sCNT}, s{sCNT}, 1
    s_waitcnt vmcnt(0)
    s_cbranch_scc0 Lchk
    Lchkok:
    """)
    gram(OPT['gA2'])
    assert not any(isinstance(x, tuple) and x[0] == 'raw' for x in A.vmq)
    A.wait(dsall=True)
    A.I("s_barrier")
    stamp(A)
    ring = [64, 68, 116, 120, 124, 128, 132, 136, 140, 176, 180, 184]
    order = [(sg, i2) for h in range(2) for sg in range(3) for i2 in range(4*h, 4*h + 4)]
    def imgr(k):
        sg, i2 = order[k]
        A.ds(('imgr', k), f"ds_read_b128 {vr(ring[k % 12])}, v{vImgR} offset:{8192*sg + 1024*i2}")
    for k in range(12):
        imgr(k)
        if k % 3 == 2: gram(1)
    rb = 0
    for k, (sg, i2) in enumerate(order):
        if k % 2 == 0: A.wait(ds=[('imgr', k + 1)])
        for r in range(4):
            A.I(f"v_add_f32 v{ACC0 + 4*i2 + r}, v{ACC0 + 4*i2 + r}, v{ring[k % 12] + r}")
        if k < 12: imgr(k + 12)
        rb += OPT['rB']
        while rb >= 10:
            rb -= 10; gram(1)
        if k % 12 == 11:
            T = k // 12; D0 = ST + 8 * T; D1 = D0 + 4
            def cv(dst, kap, x):
                r = 2 * kap + (x >> 1); d = 2 * (x & 1)
                A.I(f"v_cvt_pk_bf16_f32 v{dst}, v{ACC0 + 16*T + 4*d + r}, v{ACC0 + 16*T + 4*d + 4 + r}")
            for x in range(4): cv(D1 + x, 1, x)
            for x in range(4): cv(D0 + x, 0, x)
            for x in range(4): A.I(f"v_mov_b32_dpp v{D0+x}, v{D1+x} row_ror:8 row_mask:0xf bank_mask:0xc")
            if not OPT['xtest']: A.vm('xst', f"buffer_store_dwordx4 {vr(D0)}, v{vXst}, {srd(rWS)}, s{sXS4[2*T]} offen sc1")
            for x in range(4): cv(TMP + x, 0, x)
            for x in range(4): A.I(f"v_mov_b32_dpp v{D1+x}, v{TMP+x} row_ror:8 row_mask:0xf bank_mask:0x3")
            if not OPT['xtest'] or T == 1: A.vm('xst', f"buffer_store_dwordx4 {vr(D1)}, v{vXst}, {srd(rWS)}, s{sXS4[2*T+1]} offen sc1")
    stamp(A)
    def xloads(tag):
        for q in range(4):
            A.vm(tag, f"buffer_load_dwordx4 {vr(XL + 4*q)}, v{vXld}, {srd(rWS)}, s{sXL[q]} offen sc1")
    ops = []; rd = []
    areg = [4 * i for i in range(24)] + [208]
    for p in range(14):
        for o in range(2):
            tl = slots[2*p: 2*p+2]
            if o == 1 and tl[0][0] == tl[0][1]: continue
            a = areg[len(ops)]
            for h, (t, u) in enumerate(tl):
                if o == 0: rd.append(f"DS:w{len(ops)} ds_read_b64 {ar(a + 2*h, 2)}, v{vWt} offset:{u*3200 + t*32}")
                elif t < u: rd.append(f"DS:w{len(ops)} ds_read_b64_tr_b16 {ar(a + 2*h, 2)}, v{vWn} offset:{t*3200 + u*32}")
                else: rd += [f"v_accvgpr_write_b32 a{a + 2*h}, 0", f"v_accvgpr_write_b32 a{a + 2*h + 1}, 0"]
            ops.append((p, a))
    assert len(ops) == 25
    misc = f"""
    s_mov_b32 s{sM1}, 0xaaaaaaaa
    s_mov_b32 s{sM1+1}, 0xaaaaaaaa
    s_mov_b32 s{sM2}, 0xcccccccc
    s_mov_b32 s{sM2+1}, 0xcccccccc
    s_mov_b32 s{sMc}, 0x00f0000f
    s_mov_b32 s{sMc+1}, 0xf0000f00
    v_mov_b32 v{M}, 0x3f80
    v_mov_b32 v{SEL}, 0x3f800000
    v_cndmask_b32 v{M}, v{M}, v{SEL}, {sp(sM1)}
    v_mov_b32 v{SEL}, 0
    v_cndmask_b32 v{M}, v{SEL}, v{M}, {sp(sMc)}
    v_mov_b32 v{SEL+1}, 0
    v_mov_b32 v{SEL+4}, 0
    v_mov_b32 v{SEL+5}, 0
    v_cndmask_b32 v{SEL+2}, v{M}, v{SEL}, {sp(sM2)}
    v_cndmask_b32 v{SEL+3}, v{SEL}, v{M}, {sp(sM2)}
    v_cndmask_b32 v{vSh}, 16, v{SEL}, {sp(sM2)}
    s_lshr_b32 s{sT0}, s{sXL[0]}, 12
    s_add_u32 s{sT0}, s{sT0}, s{sW}
    s_lshl_b32 s{sT1}, s{sT0}, 1
    v_mov_b32 v{vOut}, s{sT1}
    s_and_b32 s{sT0}, s{sT0}, 127
    s_mov_b32 s{sCNT}, 0x10000
    WAIT:misc
    v_lshlrev_b32 v{vB2v}, 16, v{vB2v}
    """
    for i in range(8): misc += f"v_lshlrev_b32 v{W2F + i}, v{vSh}, v{W2F + i}\nv_lshlrev_b32 v{HB + i}, v{vSh}, v{HB + i}\n"
    for i in range(8): misc += f"v_and_b32 v{W2F + i}, 0xffff0000, v{W2F + i}\nv_and_b32 v{HB + i}, 0xffff0000, v{HB + i}\n"
    misc = [x.strip() for x in misc.split('\n') if x.strip()]
    nm = 0; polled = False
    def tick():
        nonlocal nm, polled
        nm += 1
        if nm == OPT['pollat']: xloads('xl'); polled = True
        if rd: emit(rd, 2); emit(misc, 1)
        else: emit(misc, 3)
    if OPT['pollat'] == 0: xloads('xl'); polled = True
    emit(rd, 4)
    done_ops = 0
    def cop():
        nonlocal done_ops
        p, a = ops[done_ops]
        A.wait(ds=[f"w{done_ops}"])
        A.I(f"v_mfma_f32_16x16x32_bf16 {vr(DP)}, {vr(PK + 4*p)}, {ar(a)}, " + ("0" if done_ops == 0 else vr(DP)))
        done_ops += 1
    while any(x[0] == 'm' for x in GS):
        gram(1, t6ok=True); tick()
    fin = [x[1] for x in GS]; GS.clear()
    while done_ops < 25:
        assert not any(f"w{done_ops} " in x for x in rd), done_ops
        cop(); tick()
        if done_ops == 3: A.I('\n'.join(fin))
    emit(misc, 99)
    if not polled: xloads('xl')
    stamp(A)
    A.I(f"""
    v_cndmask_b32 v{vP}, v{DP}, v{DP+1}, {sp(sM1)}
    v_cndmask_b32 v{vP2}, v{DP+2}, v{DP+3}, {sp(sM1)}
    v_cndmask_b32 v{vP}, v{vP}, v{vP2}, {sp(sM2)}
    v_cndmask_b32 v{vP}, 0, v{vP}, {sp(sMc)}
    v_mov_b32 v{vP2}, 0
    """)
    if OPT['xtest']:
        A.I(f"s_bfe_u32 s{sT1}, s{sXL[0]}, 0x2000f\ns_cmp_eq_u32 s{sT1}, 3\ns_cselect_b32 s{sCNT}, s{sCNT}, 0")
    A.I("Lpoll:")
    mx = [f"v_max3_u32 v{M}, v{XL}, v{XL+1}, v{XL+2}"] + [f"v_max3_u32 v{M}, v{M}, v{XL+i}, v{XL+i+1}" for i in range(3, 15, 2)] + [f"v_max_u32 v{M}, v{M}, v{XL+15}"]
    for q in range(4):
        A.I(f"s_waitcnt vmcnt({3-q})")
        for h in range(2):
            A.I(f"v_mfma_f32_16x16x32_bf16 {vr(H + 4*h)}, {vr(SEL + 2 - 2*h)}, {vr(XL + 4*q)}, {vr((HB if q == 0 else H) + 4*h)}")
            if q or h: A.I(mx.pop(0))
    A.I(mx.pop(0)); assert not mx
    A.I(f"""
    v_cmp_eq_u32 vcc, -1, v{M}
    s_sub_u32 s{sCNT}, s{sCNT}, 1
    s_cbranch_scc1 Lpollok
    s_cbranch_vccz Lpollok
    """)
    if OPT['slp']: A.I(f"s_sleep {OPT['slp']}")
    if OPT['mask']: A.I("s_mov_b64 exec, vcc")
    xloads('xl2')
    if OPT['mask']: A.I("s_mov_b64 exec, -1")
    A.I("s_branch Lpoll\nLpollok:")
    A.vmq = []
    stamp(A)
    c1 = 2 * 0.7978845608028654 * 1.4426950408889634; c2 = c1 * 0.044715
    A.I(f"v_mov_b32 v{M}, 0x{f2u(c1):08x}\ns_nop 1")
    for i in range(8): A.I(f"v_mul_f32 v{T1+i}, v{H+i}, v{H+i}")
    for i in range(8): A.I(f"v_fmamk_f32 v{T1+i}, v{T1+i}, 0x{f2u(c2):08x}, v{M}")
    for i in range(8): A.I(f"v_mul_f32 v{T1+i}, v{T1+i}, v{H+i}")
    for i in range(8): A.I(f"v_exp_f32 v{T1+i}, -v{T1+i}")
    for i in range(8): A.I(f"v_mul_f32 v{T2+i}, v{H+i}, v{W2F+i}")
    for i in range(8): A.I(f"v_add_f32 v{T1+i}, 1.0, v{T1+i}")
    for i in range(8): A.I(f"v_rcp_f32 v{T1+i}, v{T1+i}")
    for i in range(8): A.I(f"v_fmac_f32 v{vP if i & 1 else vP2}, v{T1+i}, v{T2+i}")
    A.I(f"""
    v_add_f32 v{vP}, v{vP}, v{vP2}
    v_add_f32_dpp v{vP}, v{vP}, v{vP} quad_perm:[1,0,3,2] row_mask:0xf bank_mask:0xf
    v_add_f32_dpp v{vP}, v{vP}, v{vP} quad_perm:[2,3,0,1] row_mask:0xf bank_mask:0xf
    v_add_f32_dpp v{vP}, v{vP}, v{vP} row_ror:4 row_mask:0xf bank_mask:0xf
    v_add_f32_dpp v{vP}, v{vP}, v{vP} row_ror:8 row_mask:0xf bank_mask:0xf
    v_mov_b32 v{vP2}, v{vP}
    v_permlane16_swap_b32 v{vP}, v{vP2}
    v_add_f32 v{vP}, v{vP}, v{vP2}
    v_mov_b32 v{vP2}, v{vP}
    v_permlane32_swap_b32 v{vP}, v{vP2}
    v_add_f32 v{vP}, v{vP}, v{vB2v}
    v_add_f32 v{vP}, v{vP}, v{vP2}
    v_cvt_pk_bf16_f32 v{vP}, v{vP}, v{vP}
    s_mov_b64 exec, 1
    global_store_short v{vOut}, v{vP}, {sp(sOUTP)}
    s_cmp_lg_u32 s{sT0}, 0
    s_cbranch_scc1 Ldone
    s_lshl_b32 s{sT1}, s{sMT}, 7
    s_add_u32 s{sT1}, s{sT1}, {FB + 4096}
    buffer_store_dword v{vT+1}, v{vZero}, {srd(rWS)}, s{sT1} offen sc1
    Ldone:
    s_mov_b64 exec, -1
    """)
    if OPT['stamps'] == 3:
        stamp(A)
        A.I(f"s_waitcnt lgkmcnt(0)\ns_not_b32 s{sST}, s{sST}")
        for i, k in enumerate([0, 2, 3, 5, 6, 8, 9, 10]):
            A.I(f"v_writelane_b32 v{T1}, s{sST+2*k}, {i}")
        A.I(f"""
        v_lshlrev_b32 v{M}, 3, v{vLane}
        s_mov_b64 exec, 0xff
        global_atomic_umax v{M}, v{T1}, {sp(sDBGP)} offset:4 sc1
        """)
    elif OPT['stamps']:
        stamp(A)
        A.I(f"""
        s_waitcnt lgkmcnt(0)
        s_mov_b64 exec, 1
        s_lshl_b32 s{sT0}, s2, 2
        s_add_u32 s{sT0}, s{sT0}, s{sW}
        s_mul_i32 s{sT0}, s{sT0}, {8*nst[0]}
        s_add_u32 s{sT0}, s{sT0}, {8<<20}
        v_mov_b32 v{M}, s{sT0}
        """)
        for i in range(nst[0]):
            A.I(f"v_mov_b32 v{T1}, s{sST+2*i}\nv_mov_b32 v{T1+1}, s{sST+2*i+1}\nglobal_store_dwordx2 v{M}, {vr(T1,2)}, {sp(sWSP)} offset:{8*i}\ns_nop 1")
    A.I("Lend:\ns_endpgm")

def build(WT):
    nst[0] = 0
    A = Asm(); segs = {}
    def seg(name, f, *a):
        st = len(A.L); f(A, *a); segs[name] = A.L[st:]
    seg('pro', prologue)
    for m in range(6):
        seg(f'body{m}', body, m, WT)
        seg(f'side{m}', side, m)
    seg('tail', tail)
    return segs

WT = W(); build(WT); WT.mode = 'emit'; segs = build(WT)
b0 = [i.text for i in segs['body0']]
for m in range(1, 6): assert [i.text for i in segs[f'body{m}']] == b0, m
pro, _ = check(segs['pro'], pad=True)
bodyI = segs['body0']
if OPT['abl']:
    bodyI, _ = check(bodyI + [Ins('s_nop 7')], pad=True); b0 = [i.text for i in bodyI]
jump = [Ins(f"s_setpc_b64 {sp(sSJ)}")]
_, v = check(pro + bodyI, label='pro+body'); assert not v or OPT['abl'], v
sides = []
for m in range(6):
    s = [Ins(f"s_add_u32 s{sSJ}, s{sSJ}, Lside{m+1}-Lside{m}"), Ins(f"s_addc_u32 s{sSJ+1}, s{sSJ+1}, 0")] if m < 5 else []
    s = s + segs[f'side{m}']
    full, _ = check(bodyI + jump + s, pad=True)
    s = full[len(bodyI) + 1:]
    assert [i.text for i in full[:len(bodyI)]] == b0 or OPT['abl']
    if m < 5:
        s = s + [Ins("s_branch Lloop")]
        _, v = check(s + bodyI, label=f'side{m}+body'); assert not v or OPT['abl'], v
    sides.append(s)
full, _ = check(bodyI + jump + sides[5] + segs['tail'], pad=True)
tailI = full[len(bodyI) + 1 + len(sides[5]):]
def txt(L): return ''.join(('' if i.cls == 'label' else '  ') + i.text + '\n' for i in L)
out = f"""; deep_cross_pnn: split-K MFMA GEMM with LDS-resident table quarter + Gram (PNN) tail
; @launch grid=(256,1,1) block=(256,1,1) lds={L_TOTAL}
.amdgcn_target "amdgcn-amd-amdhsa--gfx950"
.text
.globl {KN}
.p2align 8
.type {KN},@function
{KN}:
"""
out += txt(pro) + "Lloop:\n" + txt(bodyI + jump)
for m in range(6):
    out += f"Lside{m}:\n" + txt(sides[m])
out += txt(tailI)
out += footer(512, 256, 102)
open(sys.argv[1], 'w').write(out)
print("waits:", WT.sites)
print("body instrs", len(bodyI), "pro", len(pro), "tail", len(tailI), "stamps", nst[0])
```

```python
import sys, struct
from asmlib import *
from common import KN, footer

OPT = dict(stamps=0, pnn=1, pollat=105, itst=0, touch=1, tlead=1, ctouch=1, pst=0, bpre=0, itouch=1, abl=0, pabl=0, lagA=2, rA=20, rB=10, gA2=2, slp=0, mask=1, t1w=1, stch=1, tpos=6, defer=1, w1n=2, b1pos=1, tpost=0, tskip=0, sc=0, sc2=6, sc3=6, bar0=0, xtest=0, l24=0, w0=68, wsp=30, blag=1, rv=0, rdl=1, adl=6, g1=4, va=3, bst=0, nsq=16, w0d=3, rl=6, pk=1, gpre=1, bl5=1, vak=160, verb=0, kchk=83, fab=0, rsp=0, tm=0, ta=2, t0=0, tl=10, trot=1, tsp=1, bmod=0, tmod=0, xpos=96, pmod=0)
for a in sys.argv[2:]:
    k, v = a.split('='); OPT[k] = int(v)

L_TAB = 0
L_W = 66560
L_IDX = 91136
L_E = 123904
L_TOTAL = 156672
NIT = 5
sIDXP, sTABP, sWPP, sW1P, sB1P, sW2P, sB2P, sOUTP, sDBGP, sWSP = 4, 6, 8, 10, 12, 14, 16, 18, 20, 22
rIDX, rTAB, rWP, rW1, rWS = 24, 28, 32, 36, 40
sW, sX, sJ, sQ, sNT, sMT = 44, 45, 46, 47, 48, 49
sB = [50, 51, 52, 53]
sTCH = 54; sIE = 55
sSJ = 56
sEM0 = 58
sT0, sT1, sT2, sT3 = 59, 60, 61, 62
sPO = 63
sXL = [64, 65, 66, 67]
sXS = 68; sCNT = 69; sWM = 68
sC10, sC01 = 54, 55
sTAG = 3
sST = 70
FB = 4194304
def srd(r): return f"s[{r}:{r+3}]"
def sp(r): return f"s[{r}:{r+1}]"
vLane = 1; vB0 = 2; vB1 = 3; vSel = 4; vB0p = 5; vB1p = 6; vG0 = 7; vG1 = 8
vTch = 9; vDum = 10
vCpre = [11, 12, 13, 14]; vEr = [15, 16, 17, 18]; vEoff = 19
vIE = 20
vDma = [24, 25, 26, 27]
vXld = 28; vCnt = 30; vZero = 31; vLc = 29
ACC0 = 32; RAW = 64; BF = 128; EMB = 160; TMP = 192; IDX = 196; ADDR = 204
vIA = [212, 213, 214, 215]
vPois = 216
vT = 228
AE = 96
def vr(b, n=4): return f"v[{b}:{b+n-1}]"
def ar(b, n=4): return f"a[{b}:{b+n-1}]"
def acc(T, d): return vr(ACC0 + 16*T + 4*d) if T < 2 else ar((T - 2)*16 + 4*d)
def raw(slot, t, d=None):
    b = RAW + 16 * slot + 4 * t
    return vr(b) if d is None else f"v{b+d}"
def bf(buf, d, t=None):
    b = BF + 16 * buf + 4 * d
    return vr(b) if t is None else f"v{b+t}"
f2u = lambda x: struct.unpack('<I', struct.pack('<f', x))[0]
nst = [0]
def stamp(A):
    if OPT['stamps']:
        A.I(("s_memrealtime" if OPT['stamps'] >= 2 else "s_memtime") + f" {sp(sST + 2 * nst[0])}")
        nst[0] += 1

MOD = ['', ' nt', ' sc0', ' sc1', ' sc0 sc1', ' sc0 nt', ' sc1 nt']
def pm(b): return ' nt' if OPT['pmod'] & b else ''
def bload(A, n, t, sreg):
    lo, hi = vB0, vB1
    A.vm(('raw', n, t), f"buffer_load_dwordx4 {raw(n & 3, t)}, v{lo if t < 2 else hi}, {srd(rW1)}, s{sreg} offen" + (" offset:2048" if t & 1 else "") + MOD[OPT['bmod']])
def xf_dpp(n, t, d): return f"v_mov_b32_dpp v{TMP+d}, {raw(n & 3, t, d)} row_ror:8 row_mask:0xf bank_mask:0xf"
def xf_perm(n, t, d): return f"v_perm_b32 {bf(n & 1, d, t)}, v{TMP+d}, {raw(n & 3, t, d)}, v{vSel}"
def embread(A, n, T):
    A.ds(('emb', n, T), f"ds_read_b128 {vr(EMB + 4*T)}, v{ADDR + T}" + (" offset:32" if n & 1 else ""))
def addr_op(T, word):
    return f"v_add_u32_sdwa v{ADDR+T}, v{IDX+T}, v{vG0} dst_sel:DWORD dst_unused:UNUSED_PAD src0_sel:WORD_{word} src1_sel:DWORD"
def idxread(A, m, T):
    A.ds(('idx', m, T), f"ds_read_b32 v{IDX+T}, v{vIA[T >> 1]}" + (" offset:3200" if T & 1 else ""))
def mfma(n, T, d):
    return f"v_mfma_f32_16x16x32_bf16 {acc(T, d)}, {bf(n & 1, d)}, {vr(EMB + 4*T)}, {acc(T, d)}"
def touch(A):
    if OPT['touch']:
        A.vm('tch', f"buffer_load_dword v{vDum}, v{vTch}, {srd(rW1)}, s{sTCH} offen" + MOD[OPT['tmod']])
def ieload(A, m):
    A.vm(('ie', m), f"buffer_load_dwordx4 {vr(vIE)}, v{vEoff}, {srd(rIDX)}, s{sIE} offen")

class W:
    def __init__(self): self.sites = {}; self.mode = 'rec'
    def __call__(self, A, site, **kw):
        if self.mode == 'rec':
            nv, nd = A.wait(**kw)
            o = self.sites.get(site, (None, None))
            mn = lambda a, b: b if a is None else (a if b is None else min(a, b))
            self.sites[site] = (mn(o[0], nv), mn(o[1], nd))
        else:
            A.wait(force=self.sites[site], **kw)

FSTEP = 16 * 131072
A24 = 240; vW = 248; vR = [None, 249, 250, 251]; vXst = 252
sWO = 4; sI6 = 5; sL24 = 6; sKEY = 8; sTO = 9
class Gp:
    def __init__(self, mf): self.mf = mf; self.S = []; self.M = []; self.V = []; self.lock = False
    def n(self): return len(self.M) + len(self.V)
    def add(self, x):
        k = x[0]
        if k in ('DS', 'VM'): self.M.append(x)
        elif k == 'I' and x[1][0] == 'v': self.V.append(x)
        else: self.S.append(x)
def do(A, x, WT=None):
    k = x[0]
    if k == 'I': A.I(x[1])
    elif k == 'DS': A.ds(x[1], x[2])
    elif k == 'VM': A.vm(x[1], x[2])
    elif k == 'W':
        if x[1] is None: A.wait(ds=x[2], vm=x[3])
        else: WT(A, x[1], ds=x[2], vm=x[3])
    else: x[1](A)
def egap(A, g, WT=None):
    A.I(g.mf)
    for x in g.S + g.M + g.V: do(A, x, WT)
class Rec:
    def vm(self, tag, t): self.x = ('VM', tag, t)
    def ds(self, tag, t): self.x = ('DS', tag, t)
def rec(f, *a):
    r = Rec(); f(r, *a); return r.x
def I(t): return ('I', t)
def items(t):
    L = []
    for x in t.split('\n'):
        x = x.strip()
        if not x: continue
        if x.startswith(('VM:', 'DS:')):
            tg, y = x[3:].split(' ', 1); L.append((x[:2], tg, y))
        elif x.startswith('WAIT:'): L.append(('W', None, [], [x[5:]]))
        elif x.startswith('WAITD:'): L.append(('W', None, [x[6:]], []))
        else: L.append(I(x))
    return L
def fill(G, L, k, cap=2):
    for x in L:
        vec = x[0] in ('DS', 'VM') or (x[0] == 'I' and x[1][0] == 'v')
        if vec:
            while G[k].lock or G[k].n() >= cap or (x[0] != 'I' and G[k].M): k += 1
            G[k].add(x); k += 1
        else:
            while x[0] != 'F' and any(y[0] != 'F' for y in G[k].S): k += 1
            G[k].add(x)
            if 'm0' in str(x[1]): k += 1
    return k
NSQ = OPT['nsq']
def itgaps(m):
    G = []
    for e in range(4):
        n = 4 * m + e
        for t in range(4):
            q = [Gp(mfma(n, 2*t + (ph >> 2), ph & 3)) for ph in range(8)]
            G += q
            for ph, d in ((0, 0), (1, 1), (1, 2), (2, 3)): q[ph].add(I(xf_dpp(n + 1, t, d)))
            for ph, d in ((3, 0), (4, 1), (4, 2), (5, 3)): q[ph].add(I(xf_perm(n + 1, t, d)))
            q[6].add(I(addr_op(t + 4 * (e & 1), 1 if e < 2 else 0)))
            q[3].add(rec(embread, n + 1, 2*t)); q[7].add(rec(embread, n + 1, 2*t + 1))
            if e < 3 or (not OPT['defer'] and n < 19): q[6].add(rec(bload, n + 5, t, sB[e]))
            if e == 0 and OPT['defer']: q[0].add(rec(bload, n + 4, t, sB[3]))
            if e and t == 0: q[0].add(I(f"s_add_u32 s{sB[e-1]}, s{sB[e-1]}, {FSTEP}"))
            if e == 0 and t == 3: q[2].add(I(f"s_add_u32 s{sB[3]}, s{sB[3]}, {FSTEP}"))
            dma = {(0, 1): 0, (0, 2): 1, (0, 3): 2, (1, 0): 3}.get((e, t))
            if dma is not None:
                q[1].add(I(f"s_mov_b32 m0, s{sEM0}" if dma == 0 else "s_add_u32 m0, m0, 1024"))
                q[2].add(('VM', ('dma', m, dma), f"buffer_load_dwordx4 v{vDma[dma]}, {srd(rTAB)}, 0 offen lds"))
            if e == 0 and t == 0 and (m < 2 or NSQ < 16):
                q[2].add(('VM', ('pois', m), f"buffer_store_dwordx4 {vr(vPois)}, v{vXld}, {srd(rWS)}, s{sPO} offen sc1"))
                q[5].add(I(f"s_add_u32 s{sPO}, s{sPO}, 4096"))
            if e in (1, 2):
                q[0].add(rec(idxread, m + 1, t + 4 * (e - 1)))
                if t & 1: q[7].add(I(f"v_add_u32 v{vIA[2*(e-1) + (t >> 1)]}, 32, v{vIA[2*(e-1) + (t >> 1)]}"))
            if 4 * e + t == OPT['tpos'] and not OPT['tm']:
                q[5].add(rec(touch)); q[6].add(I(f"s_add_u32 s{sTCH}, s{sTCH}, {FSTEP}"))
            if e == 2: q[2].add(I(f"v_lshl_add_u32 v{vDma[t]}, v{vIE+t}, 8, v{vCpre[t]}"))
            if e == 3 and t == 0 and m < 4:
                q[0].add(rec(ieload, m + 2)); q[1].add(I(f"s_add_u32 s{sIE}, s{sIE}, 64"))
            dst = []; vmt = []
            if t < 3:
                dst += [('emb', n, 2*t+2), ('emb', n, 2*t+3)]; vmt += [('raw', n + 1, t + 1)]
                if e >= 2: dst += [('idx', m + 1, t + 1 + 4 * (e - 2))]
            else:
                dst += [('emb', n + 1, 0), ('emb', n + 1, 1)]; vmt += [('raw', n + 2, 0)]
                if e in (1, 2): dst += [('idx', m + 1, 4 * (e - 1))]
            if e == 0 and t == 0: dst += [('eread', m - 1)]
            if e == 1 and t == 3: vmt += [('ie', m + 1)]
            if e == 3 and t == 1: vmt += [('dma', m, 3)]
            q[7].add(('W', ('g', e, t) if 4*e + t < 16 - NSQ else None, dst, vmt))
    assert NSQ >= 4
    if OPT['tm']:
        assert NSQ == 16
        Q = -1
        for x in range(4 * OPT['w1n'], 28):
            Q = max(Q + 1, OPT['ta'] * (x - 4 * OPT['w1n']) + OPT['t0'], 4 * (min(x, 24) - OPT['tl']) - (27 - x if x >= 24 else 0))
            if OPT['tm'] == 2: Q = 16 * ((x >> 2) - OPT['w1n']) + OPT['tpos'] + (x & 3) * OPT['tsp']
            if Q >> 4 == m:
                g = 8 * (Q & 15)
                G[g + 3].add(I(f"s_cmp_eq_u32 s{sKEY}, {4 * (x & 3) + ((x >> 2) & 3) * OPT['trot']}"))
                G[g + 4].add(I(f"s_cselect_b32 s{sTO}, s{sTCH}, 0x7ff00000"))
                G[g + 5].add(('VM', 'tch', f"buffer_load_dword v{vDum}, v{vTch}, {srd(rW1)}, s{sTO} offen" + MOD[OPT['tmod']]))
                if x & 3 == 3: G[g + 6].add(I(f"s_add_u32 s{sTCH}, s{sTCH}, {FSTEP}"))
    if m == 4:
        for t in range(4):
            G[96 + 8*t + 6].add(('VM', ('raw', 24, t), f"buffer_load_dwordx4 {raw(0, t)}, v{vT+3}, {srd(rW1)}, s{sL24 + (t >> 1)} offen" + (" offset:2048" if t & 1 else "")))
    fill(G, [('DS', ('eread', m), f"ds_read_b128 {ar(AE + 16*m + 4*ks)}, v{vEr[ks]}") for ks in range(4)], 112)
    wd = items(f"""
    s_mov_b32 m0, s{sWM}
    VM:wdma buffer_load_dwordx4 v{vXld}, {srd(rWP)}, s{sWO} offen lds
    s_add_u32 s{sWM}, s{sWM}, 4096
    s_add_u32 s{sWO}, s{sWO}, 4096
    """)
    X = [wd + wd if m == 0 else wd]
    if m < 2:
        X.append([('VM', ('pois', m), f"buffer_store_dwordx4 {vr(vPois)}, v{vXld}, {srd(rWS)}, s{sPO} offen sc1"),
                  I(f"s_add_u32 s{sPO}, s{sPO}, 4096" if m == 0 else f"s_mov_b32 s{sPO}, 0x7ff00000")])
        for i in (2*m, 2*m + 1):
            o = 192 - 32 * (m + 2)
            X.append(items(f"""
            v_sub_u32 v{A24+2*i+1}, v{vIA[i]}, v{vT+5}
            DS:p24 ds_read_u16 v{A24+2*i}, v{A24+2*i+1} offset:{o}
            DS:p24 ds_read_u16 v{A24+2*i+1}, v{A24+2*i+1} offset:{o + 3200}
            """))
    if m == 0:
        X.append(items(f"""
        s_add_u32 s{sL24}, s{sW}, 96
        s_lshl_b32 s{sL24}, s{sL24}, 2
        s_add_u32 s{sL24}, s{sL24}, s{sQ}
        s_lshl_b32 s{sL24}, s{sL24}, 8
        s_add_u32 s{sL24}, s{sL24}, s{sNT}
        s_lshl_b32 s{sL24}, s{sL24}, 7
        s_add_u32 s{sL24+1}, s{sL24}, 4096
        """))
    if m == 1:
        X.append(items(f"""
        v_and_b32 v{vT+7}, 3, v{vLane}
        v_lshlrev_b32 v{vT+7}, 2, v{vT+7}
        VM:t6i buffer_load_dword v{vT+6}, v{vT+7}, {srd(rIDX)}, s{sI6} offen
        """))
    if m == 2:
        def chk(A): assert 'p24' not in A.dsq and ('pois', 1) not in A.vmq
        X.append([('F', chk), ('VM', 'flag', f"buffer_store_dword v{vT+1}, v{vT}, {srd(rWS)}, 0 offen sc1")])
        X.append([('F', chk)] + [I(f"v_add_u32 v{A24+T}, v{A24+T}, v{vEoff}") for T in range(8)])
    if m == 3:
        X.append(items(f"""
        WAIT:t6i
        s_mov_b32 vcc_lo, 0xfff0fff0
        s_mov_b32 vcc_hi, 0xfff0fff0
        v_lshl_add_u32 v{vT+6}, v{vT+6}, 8, v{vEoff}
        v_cndmask_b32 v{vT+6}, v{vT+6}, v{vSel}, vcc
        VM:t6 buffer_load_dwordx4 {ar(AE + 96)}, v{vT+6}, {srd(rTAB)}, 0 offen
        VM:t6 buffer_load_dwordx4 {ar(AE + 100)}, v{vT+6}, {srd(rTAB)}, 0 offen offset:64
        VM:t6 buffer_load_dwordx4 {ar(AE + 104)}, v{vT+6}, {srd(rTAB)}, 0 offen offset:128
        VM:t6 buffer_load_dwordx4 {ar(AE + 108)}, v{vT+6}, {srd(rTAB)}, 0 offen offset:192
        """))
    for x in X: fill(G, x, 96 if OPT['defer'] or str(x[0][1]).startswith('v_sub') else (72 if x[0][0] == 'F' else 40))
    if WT.mode == 'emit' and OPT['verb']: print(m, ''.join(str(g.n()) for g in G), ''.join(str(len(g.S)) for g in G[96:]))
    return G
def body(A, m, WT):
    for g in itgaps(m)[:128 - 8*NSQ]: egap(A, g, WT)
def side(A, m):
    G = itgaps(m)[128 - 8*NSQ:]
    if NSQ < 16 and m < NIT - 1:
        fill(G, [I(f"s_add_u32 s{sSJ}, s{sSJ}, Lside{m+1}-Lside{m}\ns_addc_u32 s{sSJ+1}, s{sSJ+1}, 0")], 8*NSQ - 3)
    for g in G: egap(A, g)
    if OPT['itst'] and m < NIT - 1: stamp(A)

def prologue(A):
    sFI, sIC, sIB, sIW = 65, 66, 67, 69
    IC = BF
    A.I(f"""
    s_cmp_ge_u32 s2, 256
    s_cbranch_scc1 Lend
    """)
    stamp(A)
    A.I(f"""
    s_load_dwordx16 s[4:19], s[0:1], 0
    s_load_dwordx4 s[20:23], s[0:1], 64
    s_getpc_b64 {sp(sSJ)}
    Lpcref:
    v_lshrrev_b32 v{vT}, 6, v0
    s_lshr_b32 s{sJ}, s2, 3
    s_lshl_b32 s{sT0}, s{sJ}, 2
    v_readfirstlane_b32 s{sW}, v{vT}
    """)
    if OPT['ctouch']:
        A.I(f"""
        v_add_lshl_u32 v{vT}, v{vT}, s{sT0}, 7
        v_and_b32 v{vT+1}, 1, v0
        v_lshl_add_u32 v{vT}, v{vT+1}, 14, v{vT}
        v_min_u32 v{vT}, Lend-Lpcref, v{vT}
        """)
        A.vm('tch', f"global_load_dword v{vDum}, v{vT}, {sp(sSJ)}" + pm(16))
    A.I(f"""
    v_and_b32 v{vLane}, 63, v0
    s_and_b32 s{sX}, s2, 7
    s_lshr_b32 s{sQ}, s{sX}, 1
    s_and_b32 s{sT2}, s{sX}, 1
    s_lshl_b32 s{sNT}, s{sT2}, 2
    s_lshr_b32 s{sIC}, s{sJ}, 3
    s_add_u32 s{sNT}, s{sNT}, s{sIC}
    s_and_b32 s{sMT}, s{sJ}, 7
    s_add_u32 s{sSJ}, s{sSJ}, Lside0-Lpcref
    s_addc_u32 s{sSJ+1}, s{sSJ+1}, 0
    s_add_u32 s{sT0}, s{sT0}, s{sW}
    s_mul_i32 s{sIW}, s{sIC}, {3*2048}
    s_mul_i32 s{sIC}, s{sIC}, {3*4096}
    s_mul_i32 s{sIB}, s{sMT}, 51200
    s_lshl_b32 s{sFI}, s{sJ}, 1
    s_add_u32 s{sFI}, s{sFI}, s{sW}
    v_lshlrev_b32 v{vXld}, 4, v0
    """)
    A.I(f"""
    s_lshl_b32 s{sTCH}, s{sT2}, 9
    s_lshl_b32 s{sT1}, s{sQ}, 15
    s_add_u32 s{sTCH}, s{sTCH}, s{sT1}
    s_lshl_b32 s{sT2}, s{sNT}, 7
    s_add_u32 s{sT1}, s{sT1}, s{sT2}
    s_lshl_b32 s{sT2}, s{sW}, 19
    s_add_u32 s{sB[3]}, s{sT1}, s{sT2}
    s_lshr_b32 s{sT1}, s{sJ}, 1
    s_lshl_b32 s{sT1}, s{sT1}, 17
    s_add_u32 s{sTCH}, s{sTCH}, s{sT1}
    s_and_b32 s{sT1}, s{sJ}, 1
    s_lshl_b32 s{sT1}, s{sT1}, 14
    s_add_u32 s{sTCH}, s{sTCH}, s{sT1}
    v_lshrrev_b32 v{vT}, 2, v{vLane}
    v_and_b32 v{vT+6}, 3, v{vLane}
    v_lshlrev_b32 v{vT+1}, 7, v{vT+6}
    v_lshl_add_u32 v{vTch}, v{vT}, 10, v{vT+1}
    s_cmp_lt_u32 s{sW}, {OPT['w1n']}
    s_cselect_b32 s{sT1}, 21, 30
    s_lshl_b32 s{sT1}, s{sW}, s{sT1}
    v_add_u32 v{vT+7}, s{sT1}, v{vTch}
    s_lshl_b32 s{sT1}, s{sW}, {0 if OPT['tm'] else 30}
    {'; ' if OPT['tm'] else ''}v_add_u32 v{vTch}, s{sT1}, v{vTch}
    v_lshlrev_b32 v{vT+8}, 8, v{vT}
    v_lshl_add_u32 v{vT+8}, v{vT+6}, 4, v{vT+8}
    s_lshl_b32 s{sT1}, s{sQ}, 6
    v_add_u32 v{vT+8}, s{sT1}, v{vT+8}
    v_lshrrev_b32 v{vT+10}, 3, v{vLane}
    v_lshlrev_b32 v{vT+10}, 8, v{vT+10}
    s_xor_b32 s{sT1}, s{sT1}, 0x80
    s_lshl_b32 s{sT2}, s{sT0}, 11
    s_add_u32 s{sT2}, s{sT2}, s{sT1}
    s_lshl_b32 s{sTAG}, s{sMT}, 7
    s_add_u32 s{sTAG}, s{sTAG}, {FB + 4096}
    """)
    for r, size in ((rIDX, 409600), (rTAB, 256000), (rW1, 13107200), (rWP, 20000), (rWS, FB + 8192)):
        A.I(f"s_mov_b32 s{r+2}, {size}\ns_mov_b32 s{r+3}, 0x20000")
    A.I(f"""
    v_bfe_u32 v{vT}, v{vLane}, 4, 1
    v_bfe_u32 v{vT+1}, v{vLane}, 3, 1
    v_lshl_add_u32 v{vT}, v{vT}, 3, v{vT+1}
    v_and_b32 v{vT+2}, 7, v{vLane}
    v_lshlrev_b32 v{vT+2}, 4, v{vT+2}
    v_lshl_add_u32 v{vT}, v{vT}, 10, v{vT+2}
    v_lshrrev_b32 v{vT+2}, 5, v{vLane}
    v_lshl_add_u32 v{vB0}, v{vT+2}, 18, v{vT}
    v_lshl_add_u32 v{vT+3}, v{vT+2}, 14, v{vT}
    v_add_u32 v{vB1}, 4096, v{vB0}
    v_mov_b32 v{vSel}, 0x05040100
    v_mov_b32 v{vT+6}, 0x03020706
    v_cmp_eq_u32 vcc, 1, v{vT+1}
    s_add_u32 s{sB[0]}, s{sB[3]}, 16384
    s_add_u32 s{sB[1]}, s{sB[3]}, 131072
    v_cndmask_b32 v{vSel}, v{vSel}, v{vT+6}, vcc
    s_add_u32 s{sB[2]}, s{sB[3]}, {131072 + 16384}
    v_mov_b32 v{vZero}, 0
    s_add_u32 s{sT3}, s{sIB}, s{sIC}
    s_and_b32 s{sFI}, s{sFI}, 63
    s_mul_i32 m0, s{sFI}, 1040
    s_lshl_b32 s{sT1}, s{sFI}, 12
    s_waitcnt lgkmcnt(0)
    """)
    def ptr(r, p): A.I(f"s_mov_b32 s{r}, s{p}\ns_mov_b32 s{r+1}, s{p+1}")
    def icload(k):
        A.vm(('ic', k), f"buffer_load_dwordx4 {vr(IC + 4*k)}, v{vXld}, {srd(rIDX)}, s{sT3} offen" + pm(1))
        if k < 12: A.I(f"""
        s_add_u32 s{sIC}, s{sIC}, 4096
        s_cmp_eq_u32 s{sIC}, {13*4096}
        s_cselect_b32 s{sIC}, 0, s{sIC}
        s_add_u32 s{sT3}, s{sIB}, s{sIC}
        """)
    def fill(i):
        if i: A.I(f"""
        s_add_u32 s{sFI}, s{sFI}, 4
        s_and_b32 s{sFI}, s{sFI}, 63
        s_mul_i32 m0, s{sFI}, 1040
        s_lshl_b32 s{sT1}, s{sFI}, 12
        """)
        A.vm('fill', f"buffer_load_dwordx4 v{vT+8}, {srd(rTAB)}, s{sT1} offen{pm(2)} lds")
    def conv(k):
        A.wait(vm=[('ic', k)])
        if OPT['pst'] and k in (0, 6): stamp(A)
        b = IC + 4 * k
        A.I(f"""
        v_perm_b32 v{b}, v{b+1}, v{b}, v{vT+14}
        v_perm_b32 v{b+1}, v{b+3}, v{b+2}, v{vT+14}
        v_add_u32 v{b+2}, s{sIW}, v{vT+12}
        v_pk_mul_lo_u16 v{b}, v{b}, v{vT+13}
        v_pk_mul_lo_u16 v{b+1}, v{b+1}, v{vT+13}
        s_add_u32 s{sIW}, s{sIW}, 2048
        v_and_b32 v{b}, 0xfff0fff0, v{b}
        s_cmp_eq_u32 s{sIW}, {13*2048}
        v_and_b32 v{b+1}, 0xfff0fff0, v{b+1}
        s_cselect_b32 s{sIW}, 0, s{sIW}
        """)
        A.ds('icw', f"ds_write_b64 v{b+2}, {vr(b, 2)}")
    ptr(rIDX, sIDXP); icload(0)
    ptr(rTAB, sTABP); fill(0)
    ptr(rW1, sW1P)
    if OPT['touch']: A.vm('tch', f"buffer_load_dword v{vDum}, v{vT+7}, {srd(rW1)}, s{sTCH} offen" + pm(4))
    icload(1); icload(2)
    if OPT['itouch']: A.vm('tch', f"buffer_load_dword v{vDum}, v{vT+10}, {srd(rTAB)}, s{sT2} offen" + pm(8))
    A.vm('b2', f"global_load_ushort v224, v{vZero}, {sp(sB2P)}" + pm(32))
    stamp(A)
    ptr(rWP, sWPP); ptr(rWS, sWSP)
    sSA, sSB, sSC = 98, 99, 100
    SL = []
    if OPT['sc']:
        SL += [f"s_buffer_load_dwordx2 s[96:97], {srd(rW1)}, s{sSC} offset:{(i >> 2)*1024 + (i & 3)*128 + 60}" for i in range(16)]
    SL += [f"s_load_dword s{sTAG}, {sp(sWSP)}, s{sTAG}",
           f"s_buffer_load_dwordx2 s[96:97], {srd(rWP)}, s{sSA} offset:60",
           f"s_buffer_load_dwordx2 s[96:97], {srd(rWP)}, s{sSA} offset:{16384+60}",
           f"s_load_dwordx2 s[96:97], {sp(sB1P)}, s{sSB} offset:60",
           f"s_load_dwordx2 s[96:97], {sp(sW2P)}, s{sSB} offset:60"]
    def sbatch(k=7):
        for _ in range(k):
            if SL: A.I(SL.pop(0))
    A.I(f"""
    s_add_u32 s{sTCH}, s{sTCH}, {FSTEP * OPT['w1n']}
    s_lshl_b32 s{sSC}, s{sW}, 12
    s_add_u32 s{sSC}, s{sSC}, s{sTCH}
    s_lshl_b32 s{sSA}, s{sT0}, 7
    s_and_b32 s{sSB}, s{sSA}, 0x380
    """)
    sbatch()
    A.I(f"""
    v_mov_b32 v{TMP}, 0
    v_mov_b32 v{TMP+1}, 0
    v_mov_b32 v{TMP+2}, 0
    v_mov_b32 v{TMP+3}, 0
    v_lshlrev_b32 v{vT+12}, 3, v0
    v_add_u32 v{vT+12}, {L_IDX}, v{vT+12}
    v_mov_b32 v{vT+13}, 0x00410041
    v_mov_b32 v{vT+14}, 0x05040100
    """)
    for i in range(2): A.I(f"v_mfma_f32_32x32x16_bf16 {vr(ACC0 + 16*i, 16)}, {vr(TMP)}, {vr(TMP)}, 0")
    for i in range(6): A.I(f"v_mfma_f32_32x32x16_bf16 {ar(16*i, 16)}, {vr(TMP)}, {vr(TMP)}, 0")
    A.I(f"""
    v_and_b32 v{vT+1}, 15, v{vLane}
    v_mul_u32_u24 v{vT}, 200, v{vT+1}
    v_lshrrev_b32 v{vT+2}, 5, v{vLane}
    v_lshlrev_b32 v{vT+5}, 2, v{vT+2}
    v_add_u32 v{vT}, v{vT}, v{vT+5}
    s_lshl_b32 s{sT0}, s{sW}, 3
    s_add_u32 s{sT0}, s{sT0}, {L_IDX}
    s_mul_i32 s{sT2}, s{sW}, 6
    v_add_u32 v{vT+5}, s{sT2}, v{vT+5}
    s_lshl_b32 s{sWM}, s{sW}, 10
    s_add_u32 s{sWM}, s{sWM}, {L_W}
    v_and_b32 v{vG0}, 16, v{vLane}
    """)
    for i in range(4):
        A.I(f"""
        s_add_u32 s{sT2}, s{sW}, {i}
        s_and_b32 s{sT2}, s{sT2}, 3
        s_mul_i32 s{sT2}, s{sT2}, 6400
        s_add_u32 s{sT2}, s{sT2}, s{sT0}
        v_add_u32 v{vIA[i]}, s{sT2}, v{vT}
        """)
    A.I(f"""
    s_lshl_b32 s{sT0}, s{sNT}, 2
    s_add_u32 s{sT0}, s{sT0}, s{sQ}
    s_lshl_b32 s{sT2}, s{sMT}, 5
    s_add_u32 s{sT2}, s{sT2}, s{sT0}
    s_lshl_b32 s{sXL[0]}, s{sT2}, 14
    s_mov_b32 s{sPO}, s{sXL[0]}
    s_lshl_b32 s{sT2}, s{sT2}, 2
    s_add_u32 s{sT2}, s{sT2}, s{sW}
    s_mul_i32 s{sIE}, s{sT2}, 400
    s_add_u32 s{sI6}, s{sIE}, 384
    v_and_b32 v{vEoff}, 48, v{vLane}
    s_lshl_b32 s{sEM0}, s{sW}, 12
    s_add_u32 s{sEM0}, s{sEM0}, {L_E}
    v_lshrrev_b32 v{vT+2}, 2, v{vEoff}
    v_xor_b32 v{vT+2}, v{vT+2}, v{vT+1}
    v_lshlrev_b32 v{vCpre[0]}, 4, v{vT+2}
    v_xor_b32 v{vCpre[1]}, 16, v{vCpre[0]}
    v_xor_b32 v{vCpre[2]}, 32, v{vCpre[0]}
    v_xor_b32 v{vCpre[3]}, 48, v{vCpre[0]}
    v_lshrrev_b32 v{vT+2}, 4, v{vLane}
    v_xor_b32 v{vT+2}, v{vT+2}, v{vT+1}
    v_lshlrev_b32 v{vT+2}, 4, v{vT+2}
    v_and_b32 v{vT+6}, 3, v{vLane}
    v_lshl_add_u32 v{vT+2}, v{vT+6}, 10, v{vT+2}
    v_lshrrev_b32 v{vT+6}, 2, v{vT+1}
    v_lshl_add_u32 v{vT+2}, v{vT+6}, 8, v{vT+2}
    v_add_u32 v{vEr[0]}, s{sEM0}, v{vT+2}
    v_xor_b32 v{vEr[1]}, 64, v{vEr[0]}
    v_xor_b32 v{vEr[2]}, 0x80, v{vEr[0]}
    v_xor_b32 v{vEr[3]}, 0xc0, v{vEr[0]}
    v_mov_b32 v{vPois}, -1
    v_mov_b32 v{vPois+1}, -1
    v_mov_b32 v{vPois+2}, -1
    v_mov_b32 v{vPois+3}, -1
    s_lshr_b32 s{sT0}, s{sXL[0]}, 10
    s_lshl_b32 s{sT2}, s{sW}, 2
    s_add_u32 s{sT0}, s{sT0}, s{sT2}
    s_add_u32 s{sT0}, s{sT0}, {FB}
    v_mov_b32 v{vT}, s{sT0}
    s_lshl_b32 s{sT0}, s{sMT}, 9
    s_lshl_b32 s{sT2}, s{sW}, 7
    s_add_u32 s{sT2}, s{sT2}, s{sT0}
    s_add_u32 s{sT2}, s{sT2}, {FB}
    v_and_b32 v{vT+2}, 31, v{vLane}
    v_lshlrev_b32 v{vT+2}, 2, v{vT+2}
    v_add_u32 v{vT+2}, s{sT2}, v{vT+2}
    """)
    A.I(f"""
    s_sub_u32 s{sT0}, s{sEM0}, {L_E - L_IDX}
    v_lshlrev_b32 v{vT+6}, 4, v{vLane}
    v_add_u32 v{vW}, s{sT0}, v{vT+6}
    v_and_b32 v{vXst}, 4, v{vLane}
    v_lshl_add_u32 v{vXst}, v{vXst}, 12, v{vEoff}
    v_and_b32 v{vT+9}, 3, v{vLane}
    v_lshl_add_u32 v{vXst}, v{vT+9}, 10, v{vXst}
    v_and_b32 v{vT+9}, 8, v{vLane}
    v_lshl_add_u32 v{vXst}, v{vT+9}, 3, v{vXst}
    """)
    for tau in (1, 2, 3):
        A.I(f"""
        s_sub_u32 s{sT0}, s{sW}, {tau}
        s_and_b32 s{sT0}, s{sT0}, 3
        s_lshl_b32 s{sT0}, s{sT0}, 12
        s_add_u32 s{sT0}, s{sT0}, {L_IDX}
        v_add_u32 v{vR[tau]}, s{sT0}, v{vT+6}
        """)
    if OPT['pst']: stamp(A)
    for k in range(3, 13):
        if k == OPT['sc2']: sbatch()
        icload(k)
    for t in range(4): bload(A, 0, t, sB[3])
    ieload(A, 0); A.I(f"s_add_u32 s{sIE}, s{sIE}, 64")
    if OPT['b1pos'] == 0:
        for t in range(4): bload(A, 1, t, sB[0])
    for i in range(1, 16):
        if i == OPT['sc3']: sbatch()
        if i <= 13: conv(i - 1)
        fill(i)
    if OPT['b1pos'] == 1:
        for t in range(4): bload(A, 1, t, sB[0])
    if OPT['bar0'] & 2:
        for t in range(4): bload(A, 2, t, sB[1])
    if OPT['bar0']:
        A.I("s_barrier")
        touch(A); A.I(f"s_add_u32 s{sTCH}, s{sTCH}, {FSTEP}")
    stamp(A)
    assert not SL
    assert A.wait(ds=['icw'], vm=[('raw', 0, 3), ('ie', 0)])[1] == 0
    A.I(f"s_add_u32 s{sTAG}, s{sTAG}, 0x9E3779B9\ns_mov_b32 s{sWO}, 0\nv_mov_b32 v{vT+1}, s{sTAG}")
    A.I(f"s_and_b32 s{sKEY}, s{sJ}, 3\ns_lshl_b32 s{sKEY}, s{sKEY}, 2\ns_add_u32 s{sKEY}, s{sKEY}, s{sW}")
    for t in range(4):
        for d in range(4): A.I(xf_dpp(0, t, d))
        for d in range(4): A.I(xf_perm(0, t, d))
    for i in range(4):
        A.I(f"v_lshl_add_u32 v{vDma[i]}, v{vIE+i}, 8, v{vCpre[i]}")
    A.I(f"s_add_u32 s{sB[3]}, s{sB[3]}, {FSTEP}")
    if OPT['pst']: stamp(A)
    A.wait(vm=['fill'])
    if OPT['pst']: stamp(A)
    A.I("s_barrier")
    stamp(A)
    if OPT['b1pos'] == 2:
        for t in range(4): bload(A, 1, t, sB[0])
    for T in range(8): idxread(A, 0, T)
    if not OPT['bar0'] & 2:
        for t in range(4): bload(A, 2, t, sB[1])
    for T in range(8):
        if T % 4 == 0: A.wait(ds=[('idx', 0, T + 3)])
        A.I(addr_op(T, 0))
        embread(A, 0, T)
    for i in range(4): A.I(f"v_add_u32 v{vIA[i]}, 32, v{vIA[i]}")
    for t in range(4): bload(A, 3, t, sB[2])
    if not OPT['defer']:
        for t in range(4): bload(A, 4, t, sB[3])
    ieload(A, 1); A.I(f"s_add_u32 s{sIE}, s{sIE}, 64")
    for _ in range(OPT['tpost']):
        touch(A); A.I(f"s_add_u32 s{sTCH}, s{sTCH}, {FSTEP}")
    A.I(f"s_add_u32 s{sB[0]}, s{sB[0]}, {FSTEP}\ns_add_u32 s{sB[1]}, s{sB[1]}, {FSTEP}\ns_add_u32 s{sB[2]}, s{sB[2]}, {FSTEP}")
    if OPT['tskip']: A.I(f"s_add_u32 s{sTCH}, s{sTCH}, {FSTEP * OPT['tskip']}")
    A.wait(ds=[('emb', 0, 0), ('emb', 0, 1)], vm=[('raw', 1, 0)])
    stamp(A)

def tail(A):
    stamp(A)
    HB = IDX; W2F = ADDR
    vB2v = 224; vT6 = vT + 12; M = vT + 13
    vP = vT + 16; vP2 = vT + 17; vWt = vT + 18; vWn = vT + 19; vOut = vT + 20; vSh = vT + 21
    PK = 72; GR = BF + 16; XL = BF; SEL = 212; DP = 220
    H = 64; T1 = 176; T2 = 184
    sM1, sM2, sMc = 50, 52, 54
    sXS4 = [sXS, sT1, sT2, sT3]
    ST = ('F', stamp)
    BFA = {20: BF, 21: BF + 16, 22: RAW + 16, 23: RAW + 32, 24: RAW + 48}
    RAWA = {21: RAW + 16, 22: RAW + 32, 23: RAW + 48, 24: RAW}
    order = [2, 4, 3, 5, 6, 7, 0, 1]
    G1 = order[:4]
    units = [(s_, T) for s_ in range(20, 25) for T in G1] + [(s_, T) for T in order[4:] for s_ in range(20, 25)]
    def ereg(s_, T):
        if s_ == 20 or T in G1: return vr(EMB + 4*T)
        if T == order[4]: return vr((212, 216, 220, 20)[s_ - 21])
        return ar(192 + 16 * order[4:].index(T) + 4 * (s_ - 21))
    G = [Gp(f"v_mfma_f32_16x16x32_bf16 {acc(T, d)}, {vr(BFA[s_] + 4*d)}, {ereg(s_, T)}, {acc(T, d)}") for s_, T in units for d in range(4)]
    def erd(s_, T):
        ad = ADDR + T if s_ == 21 else (IDX + T if s_ < 24 else A24 + T)
        return ('DS', ('e', s_, T), f"ds_read_b128 {ereg(s_, T)}, v{ad}" + (" offset:32" if s_ & 1 else ""))
    aop = lambda T: I(f"v_add_u32_sdwa v{IDX+T}, v{IDX+T}, v{vG0} dst_sel:DWORD dst_unused:UNUSED_PAD src0_sel:WORD_1 src1_sel:DWORD")
    A.wait(ds=[('emb', 20, G1[0])], vm=[('raw', 21, 3)])
    for ui, (s_, T) in enumerate(units):
        if ui:
            vm = [('raw', s_ + 1, 3)] if ui < 16 and ui % 4 == 0 else []
            G[4*ui - 1].add(('W', None, [('emb', 20, T) if s_ == 20 else ('e', s_, T)], vm))
        if ui < 16: G[4*ui + 3].add(erd(s_ + 1, T))
    for s_ in range(21, 25):
        L = []
        for d in range(4):
            L += [f"v_mov_b32_dpp v{TMP+t}, v{RAWA[s_] + 4*t + d} row_ror:8 row_mask:0xf bank_mask:0xf" for t in range(4)]
            L += [f"v_perm_b32 v{BFA[s_] + 4*d + t}, v{TMP+t}, v{RAWA[s_] + 4*t + d}, v{vSel}" for t in range(4)]
        for i, x in enumerate(L): G[16 * (s_ - 21) + (i * 17 // 32 if s_ == 24 else i // 2)].add(I(x))
    for i, T in enumerate(order): G[2 * i].add(aop(T))
    lt = [(s_, T) for s_ in (21, 24, 22, 23) for T in order[4:]]
    for i, u in enumerate(lt): G[4 * i + 1].add(erd(*u))
    G[17].add(('W', None, [('eread', 4)], []))
    for i in range(4):
        G[17 + 4*i].add(I(f"s_mov_b32 m0, s{sEM0}" if i == 0 else "s_add_u32 m0, m0, 1024"))
        G[18 + 4*i].add(('VM', 'dma5', f"buffer_load_dwordx4 v{vDma[i]}, {srd(rTAB)}, 0 offen lds"))
    G[65].add(('W', None, [], ['dma5']))
    for ks in range(4): G[65 + ks // 2].add(('DS', 'er5', f"ds_read_b128 {ar(AE + 80 + 4*ks)}, v{vEr[ks]}"))
    kfin = {T: 4 * units.index((24, T)) for T in range(8)}
    kst = {T: 4 * units.index((20, T)) for T in range(2)}
    islot = [3, 2, 0, 1, 3, 0]
    pools = [[64, 68, 72, 76], [168, 172, 176, 180]]
    VQ = []
    k = kfin[order[0]] + OPT['w0d']
    kbar = []
    def reads(i, k):
        T = order[i]; h = T & 1
        for d in range(4):
            q = pools[i & 1][d]
            G[k].add(('DS', ('ir', i, d), f"ds_read_b128 {vr(q)}, v{vR[T >> 1]} offset:{16384*islot[i] + 1024*d}"))
            ke = k + OPT['rl'] + d
            if ke + 2 >= kst[h] + d: ke = max(ke, kfin[h] + d + 3)
            VQ.append((ke, ('W', None, [('ir', i, d)], [])))
            a_ = ACC0 + 16*h + 4*d
            if i == 5 and OPT['pk']: VQ.extend((ke, I(f"v_pk_add_f32 {vr(a_ + r, 2)}, {vr(a_ + r, 2)}, {vr(q + r, 2)}")) for r in (0, 2))
            else: VQ.extend((ke, I(f"v_add_f32 v{a_ + r}, v{a_ + r}, v{q + r}")) for r in range(4))
        G[k].lock = True
    def pub(T, D0, D1, D2):
        ke = kfin[T] + 6
        def cv(dst, kap, x):
            r = 2 * kap + (x >> 1); d = 2 * (x & 1)
            VQ.append((ke, I(f"v_cvt_pk_bf16_f32 v{dst}, v{ACC0 + 16*T + 4*d + r}, v{ACC0 + 16*T + 4*d + 4 + r}")))
        for x in range(4): cv(D1 + x, 1, x)
        for x in range(4): cv(D0 + x, 0, x)
        for x in range(4): VQ.append((ke, I(f"v_mov_b32_dpp v{D0+x}, v{D1+x} row_ror:8 row_mask:0xf bank_mask:0xc")))
        VQ.append((ke, ('VM', 'xst', f"buffer_store_dwordx4 {vr(D0)}, v{vXst}, {srd(rWS)}, s{sXS4[2*T]} offen sc1")))
        for x in range(4): cv(D2 + x, 0, x)
        for x in range(4): VQ.append((ke, I(f"v_mov_b32_dpp v{D1+x}, v{D2+x} row_ror:8 row_mask:0xf bank_mask:0x3")))
        VQ.append((ke, ('VM', 'xst', f"buffer_store_dwordx4 {vr(D1)}, v{vXst}, {srd(rWS)}, s{sXS4[2*T+1]} offen sc1")))
    def bar(i, k):
        G[k].add(('W', None, [('iw', i)] + [('ir', j, d) for j in range(i) for d in range(4)], ['wdma'] if i == 3 else []))
        if not OPT['fab'] & 1: G[k].add(I("s_barrier"))
        if OPT['fab'] & 2: G[k].S.pop(0)
        if OPT['bst'] == 1 and i in (0, 2, 4, 5): G[k].add(ST)
        kbar.append(k)
    for i in range(6):
        T = order[i]
        for d in range(4):
            assert k >= kfin[T] + d + 3
            assert G[k].n() == 0, (k, G[k].M, G[k].V)
            G[k].add(('DS', ('iw', i), f"ds_write_b128 v{vW}, {acc(T, d)} offset:{16384*islot[i] + 1024*d}")); G[k].lock = True
            k += 3
            if i and d == OPT['blag'] - 1:
                bar(i - 1, k - 1); reads(i - 1, k); k += 1
    pub(0, 184, 188, 192)
    k += OPT['bl5']
    bar(5, k - 1); reads(5, k)
    pub(1, 160, 164, 20)
    fill(G, items(f"""
    s_lshl_b32 s{sXS}, s{sMT}, 2
    s_add_u32 s{sXS}, s{sXS}, s{sW}
    s_lshl_b32 s{sXS}, s{sXS}, 17
    s_lshl_b32 s{sT0}, s{sQ}, 12
    s_add_u32 s{sXS}, s{sXS}, s{sT0}
    s_lshl_b32 s{sT0}, s{sNT}, 7
    s_add_u32 s{sXS}, s{sXS}, s{sT0}
    s_add_u32 s{sT1}, s{sXS}, 32768
    s_add_u32 s{sT2}, s{sXS}, 65536
    s_add_u32 s{sT3}, s{sXS}, 98304
    s_add_u32 s{sXL[1]}, s{sXL[0]}, 4096
    s_add_u32 s{sXL[2]}, s{sXL[0]}, 8192
    s_add_u32 s{sXL[3]}, s{sXL[0]}, 12288
    s_mov_b32 s{sCNT}, 0x10000
    """), 64)
    fill(G, items(f"""
    v_lshrrev_b32 v{vP}, 3, v{vLane}
    v_lshlrev_b32 v{vP}, 7, v{vP}
    v_and_b32 v{vT+15}, 1, v{vLane}
    v_lshl_add_u32 v{vP}, v{vT+15}, 6, v{vP}
    v_bfe_u32 v{vT+15}, v{vLane}, 2, 1
    v_lshl_add_u32 v{vP}, v{vT+15}, 5, v{vP}
    VM:misc global_load_dwordx4 {vr(HB)}, v{vP}, {sp(sB1P)}
    VM:misc global_load_dwordx4 {vr(HB+4)}, v{vP}, {sp(sB1P)} offset:16
    VM:misc global_load_dwordx4 {vr(W2F)}, v{vP}, {sp(sW2P)}
    VM:misc global_load_dwordx4 {vr(W2F+4)}, v{vP}, {sp(sW2P)} offset:16
    """), 64)
    kx = fill(G, items(f"""
    v_and_b32 v{vP2}, 15, v{vLane}
    v_mul_u32_u24 v{vWt}, 200, v{vP2}
    v_lshrrev_b32 v{vP2}, 1, v{vEoff}
    v_add3_u32 v{vWt}, v{vWt}, v{vP2}, s{sWO}
    v_lshrrev_b32 v{vP2}, 2, v{vLane}
    v_mul_u32_u24 v{vWn}, 200, v{vP2}
    v_lshlrev_b32 v{vP2}, 1, v{vT+7}
    v_add3_u32 v{vWn}, v{vWn}, v{vP2}, s{sWO}
    """), 70)
    G[64].add(I(f"s_mov_b32 s{sWO}, {L_W}"))
    G[34].add(('VM', 'cnt', f"buffer_load_dword v{vCnt}, v{vT+2}, {srd(rWS)}, 0 offen sc1"))
    kx = OPT['kchk']
    while G[kx].lock: kx += 1
    G[kx].add(('W', None, [], ['cnt'])); G[kx].add(I(f"v_cmp_ne_u32 vcc, s{sTAG}, v{vCnt}"))
    G[kx + 3].add(I("s_cbranch_vccnz Lchk\nLchkok:"))
    def place(x, k, cap):
        g = G[k]
        if x[0] == 'W':
            if g.lock or g.n() >= cap or g.V: return False
        elif g.lock or g.n() >= cap or (x[0] != 'I' and g.n()): return False
        g.add(x); return True
    for k in range(64, 160):
        while VQ and VQ[0][0] <= k and place(VQ[0][1], k, OPT['va'] if k >= OPT['vak'] else 2):
            x = VQ.pop(0)[1]
            if x[0] == 'I' and x[1].startswith('v_add_f32'):
                a_ = int(x[1].split()[1][1:-1]) - ACC0; T = a_ >> 4; d = (a_ >> 2) & 3
                assert not (kst[T] + d <= k < kfin[T] + d + 3), (k, x)
    seq = [x for g in G for x in g.S + g.M + g.V] + [x[1] for x in VQ]
    for i in range(2, 6):
        for d in range(4):
            q = pools[i & 1][d]
            pr = [j for j, x in enumerate(seq) if x[0] == 'DS' and x[1] == ('ir', i, d)][0]
            pw = [j for j, x in enumerate(seq) if x[0] == 'W' and x[2] == [('ir', i - 2, d)]][0]
            la = [j for j, x in enumerate(seq) if j > pw and x[0] == 'I' and x[1].startswith('v_add_f32') and x[1].endswith(f", v{q+3}")][0]
            assert la < pr, (i, d)
    if OPT['bst'] == 2:
        for k in (22, 46, 66): G[k].add(ST)
    if WT.mode == 'emit':
        print("barriers", kbar, "chk", kx, "VQ left", len(VQ))
        print(''.join(str(min(9, g.n())) if not g.lock else ('W' if g.n() == 1 else 'R') for g in G))
    for g in G:
        if OPT['fab'] & 4: g.M = [x for x in g.M if x[1][0] != 'ir']
        if OPT['fab'] & 8: g.M = [x for x in g.M if x[1][0] != 'iw']
        if OPT['fab'] & 16: g.S = [x for x in g.S if x[0] != 'W' or not x[3]]
        if OPT['fab'] & 32: g.S = [x for x in g.S if x[0] != 'W']
        egap(A, g)
    stamp(A)
    off5 = [(t, u) for u in range(6) for t in range(u)]; dg5 = [(u, u) for u in range(6)]
    slots = dg5 + off5 + [(6, 6)] + [(t, 6) for t in range(6)]
    slot = {x: i for i, x in enumerate(slots)}
    last = off5[-1]
    comp = [(t, u) for u in range(6) for t in range(u + 1) if (t, u) != last] + [last, (6, 6)] + [(t, 6) for t in range(6)]
    C = []
    for p in range(14):
        for k in range(8):
            i = 2 * p + (k & 1); ks = k >> 1; t, u = comp[i]; g = GR + 4 * (i & 3)
            C.append(Gp(f"v_mfma_f32_16x16x32_bf16 {vr(g)}, {ar(AE + 16*t + 4*ks)}, {ar(AE + 16*u + 4*ks)}, " + ("0" if ks == 0 else vr(g))))
    ops = []; rd = []
    areg = [4 * i for i in range(24)] + [208]
    for p in range(14):
        for o in range(2):
            tl = slots[2*p: 2*p+2]
            if o == 1 and tl[0][0] == tl[0][1]: continue
            a = areg[len(ops)]
            for h, (t, u) in enumerate(tl):
                if o == 0: rd.append(('DS', 'wf', f"ds_read_b64 {ar(a + 2*h, 2)}, v{vWt} offset:{u*3200 + t*32}"))
                elif t < u: rd.append(('DS', 'wf', f"ds_read_b64_tr_b16 {ar(a + 2*h, 2)}, v{vWn} offset:{t*3200 + u*32}"))
                else: rd += [I(f"v_accvgpr_write_b32 a{a + 2*h}, 0"), I(f"v_accvgpr_write_b32 a{a + 2*h + 1}, 0")]
            ops.append((p, a))
    assert len(ops) == 25
    for j, (p, a) in enumerate(ops):
        C.append(Gp(f"v_mfma_f32_16x16x32_bf16 {vr(DP)}, {vr(PK + 4*p)}, {ar(a)}, " + ("0" if j == 0 else vr(DP))))
    g0 = OPT['gpre']
    if OPT['rv'] == 0:
        rest = [x[1] for x in VQ]
        def restf(A):
            for x in rest: do(A, x)
            stamp(A)
        if g0: C[g0 - 1].add(('F', restf)); C[g0 - 1].lock = True
        else: restf(A)
        k = g0
    else:
        G = C; k = g0
        while VQ:
            if place(VQ[0][1], k, OPT['rv']): VQ.pop(0)
            else: k += 1
        k += 1
        C[k].add(ST)
    for i in range(28):
        g = GR + 4 * (i & 3); pk = PK + 2 * slot[comp[i]]
        for h in range(2):
            C[8 * (i >> 1) + 11 + 2 * (i & 1) + h].add(I(f"v_cvt_pk_bf16_f32 v{pk+h}, v{g+2*h}, v{g+2*h+1}"))
    pa = OPT['pollat']
    for q in range(4):
        C[pa + q].add(('VM', 'xl', f"buffer_load_dwordx4 {vr(XL + 4*q)}, v{vXld}, {srd(rWS)}, s{sXL[q]} offen sc1"))
    k1 = fill(C, rd, k)
    assert k1 < 100
    C[111].add(('W', None, ['wf'], []))
    misc = f"""
    s_mov_b32 s{sM1}, 0xaaaaaaaa
    s_mov_b32 s{sM1+1}, 0xaaaaaaaa
    s_mov_b32 s{sM2}, 0xcccccccc
    s_mov_b32 s{sM2+1}, 0xcccccccc
    s_mov_b32 s{sMc}, 0x00f0000f
    s_mov_b32 s{sMc+1}, 0xf0000f00
    v_mov_b32 v{M}, 0x3f80
    v_mov_b32 v{SEL}, 0x3f800000
    v_cndmask_b32 v{M}, v{M}, v{SEL}, {sp(sM1)}
    v_mov_b32 v{SEL}, 0
    v_cndmask_b32 v{M}, v{SEL}, v{M}, {sp(sMc)}
    v_mov_b32 v{SEL+1}, 0
    v_mov_b32 v{SEL+4}, 0
    v_mov_b32 v{SEL+5}, 0
    v_cndmask_b32 v{SEL+2}, v{M}, v{SEL}, {sp(sM2)}
    v_cndmask_b32 v{SEL+3}, v{SEL}, v{M}, {sp(sM2)}
    v_cndmask_b32 v{vSh}, 16, v{SEL}, {sp(sM2)}
    s_lshr_b32 s{sT0}, s{sXL[0]}, 12
    s_add_u32 s{sT0}, s{sT0}, s{sW}
    s_lshl_b32 s{sT1}, s{sT0}, 1
    v_mov_b32 v{vOut}, s{sT1}
    s_and_b32 s{sT0}, s{sT0}, 127
    s_mov_b32 s{sCNT}, 0x10000
    WAIT:misc
    v_lshlrev_b32 v{vB2v}, 16, v{vB2v}
    v_mov_b32 v{vP2}, 0
    """
    for i in range(8): misc += f"v_lshlrev_b32 v{W2F + i}, v{vSh}, v{W2F + i}\nv_lshlrev_b32 v{HB + i}, v{vSh}, v{HB + i}\n"
    for i in range(8): misc += f"v_and_b32 v{W2F + i}, 0xffff0000, v{W2F + i}\nv_and_b32 v{HB + i}, 0xffff0000, v{HB + i}\n"
    k2 = fill(C, items(misc), k)
    if WT.mode == 'emit': print(k, k1, k2, ''.join(str(min(9, g.n())) for g in C))
    assert OPT['fab'] or ('t6' not in A.vmq and 'er5' not in A.dsq)
    for g in C: egap(A, g)
    stamp(A)
    def xloads(tag):
        for q in range(4):
            A.vm(tag, f"buffer_load_dwordx4 {vr(XL + 4*q)}, v{vXld}, {srd(rWS)}, s{sXL[q]} offen sc1")
    A.I(f"""
    v_cndmask_b32 v{vP}, v{DP}, v{DP+1}, {sp(sM1)}
    v_cndmask_b32 v{DP}, v{DP+2}, v{DP+3}, {sp(sM1)}
    v_cndmask_b32 v{vP}, v{vP}, v{DP}, {sp(sM2)}
    v_cndmask_b32 v{vP}, 0, v{vP}, {sp(sMc)}
    """)
    if OPT['xtest']:
        A.I(f"s_bfe_u32 s{sT1}, s{sXL[0]}, 0x2000f\ns_cmp_eq_u32 s{sT1}, 3\ns_cselect_b32 s{sCNT}, s{sCNT}, 0")
    A.I("Lpoll:")
    mx = [f"v_max3_u32 v{M}, v{XL}, v{XL+1}, v{XL+2}"] + [f"v_max3_u32 v{M}, v{M}, v{XL+i}, v{XL+i+1}" for i in range(3, 15, 2)] + [f"v_max_u32 v{M}, v{M}, v{XL+15}"]
    for q in range(4):
        A.I(f"s_waitcnt vmcnt({3-q})")
        for h in range(2):
            A.I(f"v_mfma_f32_16x16x32_bf16 {vr(H + 4*h)}, {vr(SEL + 2 - 2*h)}, {vr(XL + 4*q)}, {vr((HB if q == 0 else H) + 4*h)}")
            if q or h: A.I(mx.pop(0))
    A.I(mx.pop(0)); assert not mx
    A.I(f"""
    v_cmp_eq_u32 vcc, -1, v{M}
    s_sub_u32 s{sCNT}, s{sCNT}, 1
    s_cbranch_scc1 Lpollok
    s_cbranch_vccz Lpollok
    """)
    if OPT['slp']: A.I(f"s_sleep {OPT['slp']}")
    if OPT['mask']: A.I("s_mov_b64 exec, vcc")
    xloads('xl2')
    if OPT['mask']: A.I("s_mov_b64 exec, -1")
    A.I("s_branch Lpoll\nLpollok:")
    A.vmq = []
    stamp(A)
    c1 = 2 * 0.7978845608028654 * 1.4426950408889634; c2 = c1 * 0.044715
    A.I(f"v_mov_b32 v{M}, 0x{f2u(c1):08x}\ns_nop 1")
    for i in range(8): A.I(f"v_mul_f32 v{T1+i}, v{H+i}, v{H+i}")
    for i in range(8): A.I(f"v_fmamk_f32 v{T1+i}, v{T1+i}, 0x{f2u(c2):08x}, v{M}")
    for i in range(8): A.I(f"v_mul_f32 v{T1+i}, v{T1+i}, v{H+i}")
    for i in range(8): A.I(f"v_exp_f32 v{T1+i}, -v{T1+i}")
    for i in range(8): A.I(f"v_mul_f32 v{T2+i}, v{H+i}, v{W2F+i}")
    for i in range(8): A.I(f"v_add_f32 v{T1+i}, 1.0, v{T1+i}")
    for i in range(8): A.I(f"v_rcp_f32 v{T1+i}, v{T1+i}")
    for i in range(8): A.I(f"v_fmac_f32 v{vP if i & 1 else vP2}, v{T1+i}, v{T2+i}")
    A.I(f"""
    v_add_f32 v{vP}, v{vP}, v{vP2}
    v_add_f32_dpp v{vP}, v{vP}, v{vP} quad_perm:[1,0,3,2] row_mask:0xf bank_mask:0xf
    v_add_f32_dpp v{vP}, v{vP}, v{vP} quad_perm:[2,3,0,1] row_mask:0xf bank_mask:0xf
    v_add_f32_dpp v{vP}, v{vP}, v{vP} row_ror:4 row_mask:0xf bank_mask:0xf
    v_add_f32_dpp v{vP}, v{vP}, v{vP} row_ror:8 row_mask:0xf bank_mask:0xf
    v_mov_b32 v{vP2}, v{vP}
    v_permlane16_swap_b32 v{vP}, v{vP2}
    v_add_f32 v{vP}, v{vP}, v{vP2}
    v_mov_b32 v{vP2}, v{vP}
    v_permlane32_swap_b32 v{vP}, v{vP2}
    v_add_f32 v{vP}, v{vP}, v{vB2v}
    v_add_f32 v{vP}, v{vP}, v{vP2}
    v_cvt_pk_bf16_f32 v{vP}, v{vP}, v{vP}
    s_mov_b64 exec, 1
    global_store_short v{vOut}, v{vP}, {sp(sOUTP)}
    s_cmp_lg_u32 s{sT0}, 0
    s_cbranch_scc1 Ldone
    s_lshl_b32 s{sT1}, s{sMT}, 7
    s_add_u32 s{sT1}, s{sT1}, {FB + 4096}
    buffer_store_dword v{vT+1}, v{vZero}, {srd(rWS)}, s{sT1} offen sc1
    Ldone:
    s_mov_b64 exec, -1
    """)
    if OPT['stamps'] == 3:
        stamp(A)
        A.I(f"s_waitcnt lgkmcnt(0)\ns_not_b32 s{sST}, s{sST}")
        for i, k in enumerate([0, 2, 3, 5, 6, 8, 9, 10]):
            A.I(f"v_writelane_b32 v{T1}, s{sST+2*k}, {i}")
        A.I(f"""
        v_lshlrev_b32 v{M}, 3, v{vLane}
        s_mov_b64 exec, 0xff
        global_atomic_umax v{M}, v{T1}, {sp(sDBGP)} offset:4 sc1
        """)
    elif OPT['stamps']:
        stamp(A)
        A.I(f"""
        s_waitcnt lgkmcnt(0)
        s_mov_b64 exec, 1
        s_lshl_b32 s{sT0}, s2, 2
        s_add_u32 s{sT0}, s{sT0}, s{sW}
        s_mul_i32 s{sT0}, s{sT0}, {8*nst[0]}
        s_add_u32 s{sT0}, s{sT0}, {8<<20}
        v_mov_b32 v{M}, s{sT0}
        """)
        for i in range(nst[0]):
            A.I(f"v_mov_b32 v{T1}, s{sST+2*i}\nv_mov_b32 v{T1+1}, s{sST+2*i+1}\nglobal_store_dwordx2 v{M}, {vr(T1,2)}, {sp(sWSP)} offset:{8*i}\ns_nop 1")
    A.I(f"""
    Lend:
    s_endpgm
    Lchk:
    buffer_load_dword v{vCnt}, v{vT+2}, {srd(rWS)}, 0 offen sc1
    s_sub_u32 s{sCNT}, s{sCNT}, 1
    s_cbranch_scc1 Lchkok
    s_waitcnt vmcnt(0)
    v_cmp_ne_u32 vcc, s{sTAG}, v{vCnt}
    s_cbranch_vccnz Lchk
    s_branch Lchkok
    s_endpgm
    """)

def build(WT):
    nst[0] = 0
    A = Asm(); segs = {}
    def seg(name, f, *a):
        st = len(A.L); f(A, *a); segs[name] = A.L[st:]
    seg('pro', prologue)
    for m in range(NIT):
        seg(f'body{m}', body, m, WT)
        seg(f'side{m}', side, m)
    seg('tail', tail)
    return segs

WT = W(); build(WT); WT.mode = 'emit'; segs = build(WT)
b0 = [i.text for i in segs['body0']]
for m in range(1, NIT): assert [i.text for i in segs[f'body{m}']] == b0, m
pro, _ = check(segs['pro'], pad=True)
bodyI = segs['body0']
jump = [Ins(f"s_setpc_b64 {sp(sSJ)}")] if NSQ < 16 else []
_, v = check(pro + bodyI, label='pro+body'); assert not v, v
sides = []
for m in range(NIT):
    s = segs[f'side{m}']
    prev = bodyI + jump if NSQ < 16 else (sides[-1] if m else pro)
    _, v = check(prev + s, label=f'side{m}'); assert not v, v
    if m < NIT - 1 and NSQ < 16:
        s = s + [Ins("s_branch Lloop")]
        _, v = check(s + bodyI, label=f'side{m}+body'); assert not v, v
    sides.append(s)
full, _ = check(sides[NIT-1] + segs['tail'], pad=True)
tailI = full[len(sides[NIT-1]):]
def txt(L): return ''.join(('' if i.cls == 'label' else '  ') + i.text + '\n' for i in L)
out = f"""; deep_cross_pnn: split-K MFMA GEMM with LDS-resident table quarter + Gram (PNN) tail
; @launch grid=(256,1,1) block=(256,1,1) lds={L_TOTAL}
.amdgcn_target "amdgcn-amd-amdhsa--gfx950"
.text
.globl {KN}
.p2align 8
.type {KN},@function
{KN}:
"""
out += txt(pro) + "Lloop:\n" + txt(bodyI + jump)
for m in range(NIT):
    out += f"Lside{m}:\n" + txt(sides[m])
out += txt(tailI)
out += footer(512, 256, 102)
open(sys.argv[1], 'w').write(out)

print("body instrs", len(bodyI), "pro", len(pro), "tail", len(tailI), "stamps", nst[0])
```

```python
import sys, struct
from asmlib import *
from common import KN, footer

OPT = dict(stamps=0, pnn=1, pollat=105, itst=0, touch=1, tlead=1, ctouch=1, pst=0, bpre=0, itouch=1, abl=0, pabl=0, lagA=2, rA=20, rB=10, gA2=2, slp=0, mask=1, t1w=1, stch=1, tpos=6, defer=1, w1n=2, b1pos=1, tpost=0, tskip=0, sc=0, sc2=6, sc3=6, bar0=0, xtest=0, l24=0, w0=68, wsp=30, blag=1, rv=0, rdl=1, adl=6, g1=4, va=3, bst=0, nsq=16, w0d=3, rl=6, pk=1, gpre=1, bl5=1, vak=160, verb=0, kchk=83, fab=0, rsp=0, tm=0, ta=2, t0=0, tl=10, trot=1, tsp=1, bmod=0, tmod=0, xpos=96, pmod=0)
for a in sys.argv[2:]:
    k, v = a.split('='); OPT[k] = int(v)

L_TAB = 0
L_W = 66560
L_IDX = 91136
L_E = 123904
L_TOTAL = 156672
NIT = 5
sIDXP, sTABP, sWPP, sW1P, sB1P, sW2P, sB2P, sOUTP, sDBGP, sWSP = 4, 6, 8, 10, 12, 14, 16, 18, 20, 22
rIDX, rTAB, rWP, rW1, rWS = 24, 28, 32, 36, 40
sW, sX, sJ, sQ, sNT, sMT = 44, 45, 46, 47, 48, 49
sB = [50, 51, 52, 53]
sTCH = 54; sIE = 55
sSJ = 56
sEM0 = 58
sT0, sT1, sT2, sT3 = 59, 60, 61, 62
sPO = 63
sXL = [64, 65, 66, 67]
sXS = 68; sCNT = 69; sWM = 68
sC10, sC01 = 54, 55
sTAG = 3
sST = 70
FB = 4194304
def srd(r): return f"s[{r}:{r+3}]"
def sp(r): return f"s[{r}:{r+1}]"
vLane = 1; vB0 = 2; vB1 = 3; vSel = 4; vB0p = 5; vB1p = 6; vG0 = 7; vG1 = 8
vTch = 9; vDum = 10
vCpre = [11, 12, 13, 14]; vEr = [15, 16, 17, 18]; vEoff = 19
vIE = 20
vDma = [24, 25, 26, 27]
vXld = 28; vCnt = 30; vZero = 31; vLc = 29
ACC0 = 32; RAW = 64; BF = 128; EMB = 160; TMP = 192; IDX = 196; ADDR = 204
vIA = [212, 213, 214, 215]
vPois = 216
vT = 228
AE = 96
def vr(b, n=4): return f"v[{b}:{b+n-1}]"
def ar(b, n=4): return f"a[{b}:{b+n-1}]"
def acc(T, d): return vr(ACC0 + 16*T + 4*d) if T < 2 else ar((T - 2)*16 + 4*d)
def raw(slot, t, d=None):
    b = RAW + 16 * slot + 4 * t
    return vr(b) if d is None else f"v{b+d}"
def bf(buf, d, t=None):
    b = BF + 16 * buf + 4 * d
    return vr(b) if t is None else f"v{b+t}"
f2u = lambda x: struct.unpack('<I', struct.pack('<f', x))[0]
nst = [0]
def stamp(A):
    if OPT['stamps']:
        A.I(("s_memrealtime" if OPT['stamps'] >= 2 else "s_memtime") + f" {sp(sST + 2 * nst[0])}")
        nst[0] += 1

MOD = ['', ' nt', ' sc0', ' sc1', ' sc0 sc1', ' sc0 nt', ' sc1 nt']
def pm(b): return ' nt' if OPT['pmod'] & b else ''
def bload(A, n, t, sreg):
    lo, hi = vB0, vB1
    A.vm(('raw', n, t), f"buffer_load_dwordx4 {raw(n & 3, t)}, v{lo if t < 2 else hi}, {srd(rW1)}, s{sreg} offen" + (" offset:2048" if t & 1 else "") + MOD[OPT['bmod']])
def xf_dpp(n, t, d): return f"v_mov_b32_dpp v{TMP+d}, {raw(n & 3, t, d)} row_ror:8 row_mask:0xf bank_mask:0xf"
def xf_perm(n, t, d): return f"v_perm_b32 {bf(n & 1, d, t)}, v{TMP+d}, {raw(n & 3, t, d)}, v{vSel}"
def embread(A, n, T):
    A.ds(('emb', n, T), f"ds_read_b128 {vr(EMB + 4*T)}, v{ADDR + T}" + (" offset:32" if n & 1 else ""))
def addr_op(T, word):
    return f"v_add_u32_sdwa v{ADDR+T}, v{IDX+T}, v{vG0} dst_sel:DWORD dst_unused:UNUSED_PAD src0_sel:WORD_{word} src1_sel:DWORD"
def idxread(A, m, T):
    A.ds(('idx', m, T), f"ds_read_b32 v{IDX+T}, v{vIA[T >> 1]}" + (" offset:3200" if T & 1 else ""))
def mfma(n, T, d):
    return f"v_mfma_f32_16x16x32_bf16 {acc(T, d)}, {bf(n & 1, d)}, {vr(EMB + 4*T)}, {acc(T, d)}"
def touch(A):
    if OPT['touch']:
        A.vm('tch', f"buffer_load_dword v{vDum}, v{vTch}, {srd(rW1)}, s{sTCH} offen" + MOD[OPT['tmod']])
def ieload(A, m):
    A.vm(('ie', m), f"buffer_load_dwordx4 {vr(vIE)}, v{vEoff}, {srd(rIDX)}, s{sIE} offen")

class W:
    def __init__(self): self.sites = {}; self.mode = 'rec'
    def __call__(self, A, site, **kw):
        if self.mode == 'rec':
            nv, nd = A.wait(**kw)
            o = self.sites.get(site, (None, None))
            mn = lambda a, b: b if a is None else (a if b is None else min(a, b))
            self.sites[site] = (mn(o[0], nv), mn(o[1], nd))
        else:
            A.wait(force=self.sites[site], **kw)

FSTEP = 16 * 131072
A24 = 240; vW = 248; vR = [None, 249, 250, 251]; vXst = 252
sWO = 4; sI6 = 5; sL24 = 6; sKEY = 8; sTO = 9
class Gp:
    def __init__(self, mf): self.mf = mf; self.S = []; self.M = []; self.V = []; self.lock = False
    def n(self): return len(self.M) + len(self.V)
    def add(self, x):
        k = x[0]
        if k in ('DS', 'VM'): self.M.append(x)
        elif k == 'I' and x[1][0] == 'v': self.V.append(x)
        else: self.S.append(x)
def do(A, x, WT=None):
    k = x[0]
    if k == 'I': A.I(x[1])
    elif k == 'DS': A.ds(x[1], x[2])
    elif k == 'VM': A.vm(x[1], x[2])
    elif k == 'W':
        if x[1] is None: A.wait(ds=x[2], vm=x[3])
        else: WT(A, x[1], ds=x[2], vm=x[3])
    else: x[1](A)
def egap(A, g, WT=None):
    A.I(g.mf)
    for x in g.S + g.M + g.V: do(A, x, WT)
class Rec:
    def vm(self, tag, t): self.x = ('VM', tag, t)
    def ds(self, tag, t): self.x = ('DS', tag, t)
def rec(f, *a):
    r = Rec(); f(r, *a); return r.x
def I(t): return ('I', t)
def items(t):
    L = []
    for x in t.split('\n'):
        x = x.strip()
        if not x: continue
        if x.startswith(('VM:', 'DS:')):
            tg, y = x[3:].split(' ', 1); L.append((x[:2], tg, y))
        elif x.startswith('WAIT:'): L.append(('W', None, [], [x[5:]]))
        elif x.startswith('WAITD:'): L.append(('W', None, [x[6:]], []))
        else: L.append(I(x))
    return L
def fill(G, L, k, cap=2):
    for x in L:
        vec = x[0] in ('DS', 'VM') or (x[0] == 'I' and x[1][0] == 'v')
        if vec:
            while G[k].lock or G[k].n() >= cap or (x[0] != 'I' and G[k].M): k += 1
            G[k].add(x); k += 1
        else:
            while x[0] != 'F' and any(y[0] != 'F' for y in G[k].S): k += 1
            G[k].add(x)
            if 'm0' in str(x[1]): k += 1
    return k
NSQ = OPT['nsq']
def itgaps(m):
    G = []
    for e in range(4):
        n = 4 * m + e
        for t in range(4):
            q = [Gp(mfma(n, 2*t + (ph >> 2), ph & 3)) for ph in range(8)]
            G += q
            for ph, d in ((0, 0), (1, 1), (1, 2), (2, 3)): q[ph].add(I(xf_dpp(n + 1, t, d)))
            for ph, d in ((3, 0), (4, 1), (4, 2), (5, 3)): q[ph].add(I(xf_perm(n + 1, t, d)))
            q[6].add(I(addr_op(t + 4 * (e & 1), 1 if e < 2 else 0)))
            q[3].add(rec(embread, n + 1, 2*t)); q[7].add(rec(embread, n + 1, 2*t + 1))
            if e < 3 or (not OPT['defer'] and n < 19): q[6].add(rec(bload, n + 5, t, sB[e]))
            if e == 0 and OPT['defer']: q[0].add(rec(bload, n + 4, t, sB[3]))
            if e and t == 0: q[0].add(I(f"s_add_u32 s{sB[e-1]}, s{sB[e-1]}, {FSTEP}"))
            if e == 0 and t == 3: q[2].add(I(f"s_add_u32 s{sB[3]}, s{sB[3]}, {FSTEP}"))
            dma = {(0, 1): 0, (0, 2): 1, (0, 3): 2, (1, 0): 3}.get((e, t))
            if dma is not None:
                q[1].add(I(f"s_mov_b32 m0, s{sEM0}" if dma == 0 else "s_add_u32 m0, m0, 1024"))
                q[2].add(('VM', ('dma', m, dma), f"buffer_load_dwordx4 v{vDma[dma]}, {srd(rTAB)}, 0 offen lds"))
            if e == 0 and t == 0 and (m < 2 or NSQ < 16):
                q[2].add(('VM', ('pois', m), f"buffer_store_dwordx4 {vr(vPois)}, v{vXld}, {srd(rWS)}, s{sPO} offen sc1"))
                q[5].add(I(f"s_add_u32 s{sPO}, s{sPO}, 4096"))
            if e in (1, 2):
                q[0].add(rec(idxread, m + 1, t + 4 * (e - 1)))
                if t & 1: q[7].add(I(f"v_add_u32 v{vIA[2*(e-1) + (t >> 1)]}, 32, v{vIA[2*(e-1) + (t >> 1)]}"))
            if 4 * e + t == OPT['tpos'] and not OPT['tm']:
                q[5].add(rec(touch)); q[6].add(I(f"s_add_u32 s{sTCH}, s{sTCH}, {FSTEP}"))
            if e == 2: q[2].add(I(f"v_lshl_add_u32 v{vDma[t]}, v{vIE+t}, 8, v{vCpre[t]}"))
            if e == 3 and t == 0 and m < 4:
                q[0].add(rec(ieload, m + 2)); q[1].add(I(f"s_add_u32 s{sIE}, s{sIE}, 64"))
            dst = []; vmt = []
            if t < 3:
                dst += [('emb', n, 2*t+2), ('emb', n, 2*t+3)]; vmt += [('raw', n + 1, t + 1)]
                if e >= 2: dst += [('idx', m + 1, t + 1 + 4 * (e - 2))]
            else:
                dst += [('emb', n + 1, 0), ('emb', n + 1, 1)]; vmt += [('raw', n + 2, 0)]
                if e in (1, 2): dst += [('idx', m + 1, 4 * (e - 1))]
            if e == 0 and t == 0: dst += [('eread', m - 1)]
            if e == 1 and t == 3: vmt += [('ie', m + 1)]
            if e == 3 and t == 1: vmt += [('dma', m, 3)]
            q[7].add(('W', ('g', e, t) if 4*e + t < 16 - NSQ else None, dst, vmt))
    assert NSQ >= 4
    if OPT['tm']:
        assert NSQ == 16
        Q = -1
        for x in range(4 * OPT['w1n'], 28):
            Q = max(Q + 1, OPT['ta'] * (x - 4 * OPT['w1n']) + OPT['t0'], 4 * (min(x, 24) - OPT['tl']) - (27 - x if x >= 24 else 0))
            if OPT['tm'] == 2: Q = 16 * ((x >> 2) - OPT['w1n']) + OPT['tpos'] + (x & 3) * OPT['tsp']
            if Q >> 4 == m:
                g = 8 * (Q & 15)
                G[g + 3].add(I(f"s_cmp_eq_u32 s{sKEY}, {4 * (x & 3) + ((x >> 2) & 3) * OPT['trot']}"))
                G[g + 4].add(I(f"s_cselect_b32 s{sTO}, s{sTCH}, 0x7ff00000"))
                G[g + 5].add(('VM', 'tch', f"buffer_load_dword v{vDum}, v{vTch}, {srd(rW1)}, s{sTO} offen" + MOD[OPT['tmod']]))
                if x & 3 == 3: G[g + 6].add(I(f"s_add_u32 s{sTCH}, s{sTCH}, {FSTEP}"))
    if m == 4:
        for t in range(4):
            G[96 + 8*t + 6].add(('VM', ('raw', 24, t), f"buffer_load_dwordx4 {raw(0, t)}, v{vT+3}, {srd(rW1)}, s{sL24 + (t >> 1)} offen" + (" offset:2048" if t & 1 else "")))
    fill(G, [('DS', ('eread', m), f"ds_read_b128 {ar(AE + 16*m + 4*ks)}, v{vEr[ks]}") for ks in range(4)], 112)
    wd = items(f"""
    s_mov_b32 m0, s{sWM}
    VM:wdma buffer_load_dwordx4 v{vXld}, {srd(rWP)}, s{sWO} offen lds
    s_add_u32 s{sWM}, s{sWM}, 4096
    s_add_u32 s{sWO}, s{sWO}, 4096
    """)
    X = [wd + wd if m == 0 else wd]
    if m < 2:
        X.append([('VM', ('pois', m), f"buffer_store_dwordx4 {vr(vPois)}, v{vXld}, {srd(rWS)}, s{sPO} offen sc1"),
                  I(f"s_add_u32 s{sPO}, s{sPO}, 4096" if m == 0 else f"s_mov_b32 s{sPO}, 0x7ff00000")])
        for i in (2*m, 2*m + 1):
            o = 192 - 32 * (m + 2)
            X.append(items(f"""
            v_sub_u32 v{A24+2*i+1}, v{vIA[i]}, v{vT+5}
            DS:p24 ds_read_u16 v{A24+2*i}, v{A24+2*i+1} offset:{o}
            DS:p24 ds_read_u16 v{A24+2*i+1}, v{A24+2*i+1} offset:{o + 3200}
            """))
    if m == 0:
        X.append(items(f"""
        s_add_u32 s{sL24}, s{sW}, 96
        s_lshl_b32 s{sL24}, s{sL24}, 2
        s_add_u32 s{sL24}, s{sL24}, s{sQ}
        s_lshl_b32 s{sL24}, s{sL24}, 8
        s_add_u32 s{sL24}, s{sL24}, s{sNT}
        s_lshl_b32 s{sL24}, s{sL24}, 7
        s_add_u32 s{sL24+1}, s{sL24}, 4096
        """))
    if m == 1:
        X.append(items(f"""
        v_and_b32 v{vT+7}, 3, v{vLane}
        v_lshlrev_b32 v{vT+7}, 2, v{vT+7}
        VM:t6i buffer_load_dword v{vT+6}, v{vT+7}, {srd(rIDX)}, s{sI6} offen
        """))
    if m == 2:
        def chk(A): assert 'p24' not in A.dsq and ('pois', 1) not in A.vmq
        X.append([('F', chk), ('VM', 'flag', f"buffer_store_dword v{vT+1}, v{vT}, {srd(rWS)}, 0 offen sc1")])
        X.append([('F', chk)] + [I(f"v_add_u32 v{A24+T}, v{A24+T}, v{vEoff}") for T in range(8)])
    if m == 3:
        X.append(items(f"""
        WAIT:t6i
        s_mov_b32 vcc_lo, 0xfff0fff0
        s_mov_b32 vcc_hi, 0xfff0fff0
        v_lshl_add_u32 v{vT+6}, v{vT+6}, 8, v{vEoff}
        v_cndmask_b32 v{vT+6}, v{vT+6}, v{vSel}, vcc
        VM:t6 buffer_load_dwordx4 {ar(AE + 96)}, v{vT+6}, {srd(rTAB)}, 0 offen
        VM:t6 buffer_load_dwordx4 {ar(AE + 100)}, v{vT+6}, {srd(rTAB)}, 0 offen offset:64
        VM:t6 buffer_load_dwordx4 {ar(AE + 104)}, v{vT+6}, {srd(rTAB)}, 0 offen offset:128
        VM:t6 buffer_load_dwordx4 {ar(AE + 108)}, v{vT+6}, {srd(rTAB)}, 0 offen offset:192
        """))
    for x in X: fill(G, x, 96 if OPT['defer'] or str(x[0][1]).startswith('v_sub') else (72 if x[0][0] == 'F' else 40))
    ab = OPT['abl']
    def keep(x):
        t = x[-1]
        if ab & 1 and t.startswith('buffer_load_dwordx4') and srd(rW1) in t: return False
        if ab & 2 and t.startswith('ds_read_b128 v'): return False
        if ab & 4 and t.startswith('v_mov_b32_dpp'): return False
        if ab & 8 and t.startswith('v_perm'): return False
        if ab & 16 and (t.endswith(' lds') or t.startswith('ds_read_b128 a')): return False
        if ab & 32 and (t.startswith('ds_read_b32') or t.startswith('v_add_u32_sdwa')): return False
        if ab & 64 and t.startswith('buffer_load_dword v'): return False
        return True
    for g in G:
        g.M = [x for x in g.M if keep(x)]; g.V = [x for x in g.V if keep(x)]
        if ab: g.S = [x for x in g.S if x[0] != 'F']
    if WT.mode == 'emit' and OPT['verb']: print(m, ''.join(str(g.n()) for g in G), ''.join(str(len(g.S)) for g in G[96:]))
    return G
def body(A, m, WT):
    for g in itgaps(m)[:128 - 8*NSQ]: egap(A, g, WT)
def side(A, m):
    G = itgaps(m)[128 - 8*NSQ:]
    if NSQ < 16 and m < NIT - 1:
        fill(G, [I(f"s_add_u32 s{sSJ}, s{sSJ}, Lside{m+1}-Lside{m}\ns_addc_u32 s{sSJ+1}, s{sSJ+1}, 0")], 8*NSQ - 3)
    for g in G: egap(A, g)
    if OPT['itst'] and m < NIT - 1: stamp(A)

def prologue(A):
    sFI, sIC, sIB, sIW = 65, 66, 67, 69
    IC = BF
    A.I(f"""
    s_cmp_ge_u32 s2, 256
    s_cbranch_scc1 Lend
    """)
    stamp(A)
    A.I(f"""
    s_load_dwordx16 s[4:19], s[0:1], 0
    s_load_dwordx4 s[20:23], s[0:1], 64
    s_getpc_b64 {sp(sSJ)}
    Lpcref:
    v_lshrrev_b32 v{vT}, 6, v0
    s_lshr_b32 s{sJ}, s2, 3
    s_lshl_b32 s{sT0}, s{sJ}, 2
    v_readfirstlane_b32 s{sW}, v{vT}
    """)
    if OPT['ctouch']:
        A.I(f"""
        v_add_lshl_u32 v{vT}, v{vT}, s{sT0}, 7
        v_and_b32 v{vT+1}, 1, v0
        v_lshl_add_u32 v{vT}, v{vT+1}, 14, v{vT}
        v_min_u32 v{vT}, Lend-Lpcref, v{vT}
        """)
        A.vm('tch', f"global_load_dword v{vDum}, v{vT}, {sp(sSJ)}" + pm(16))
    A.I(f"""
    v_and_b32 v{vLane}, 63, v0
    s_and_b32 s{sX}, s2, 7
    s_lshr_b32 s{sQ}, s{sX}, 1
    s_and_b32 s{sT2}, s{sX}, 1
    s_lshl_b32 s{sNT}, s{sT2}, 2
    s_lshr_b32 s{sIC}, s{sJ}, 3
    s_add_u32 s{sNT}, s{sNT}, s{sIC}
    s_and_b32 s{sMT}, s{sJ}, 7
    s_add_u32 s{sSJ}, s{sSJ}, Lside0-Lpcref
    s_addc_u32 s{sSJ+1}, s{sSJ+1}, 0
    s_add_u32 s{sT0}, s{sT0}, s{sW}
    s_mul_i32 s{sIW}, s{sIC}, {3*2048}
    s_mul_i32 s{sIC}, s{sIC}, {3*4096}
    s_mul_i32 s{sIB}, s{sMT}, 51200
    s_lshl_b32 s{sFI}, s{sJ}, 1
    s_add_u32 s{sFI}, s{sFI}, s{sW}
    v_lshlrev_b32 v{vXld}, 4, v0
    """)
    A.I(f"""
    s_lshl_b32 s{sTCH}, s{sT2}, 9
    s_lshl_b32 s{sT1}, s{sQ}, 15
    s_add_u32 s{sTCH}, s{sTCH}, s{sT1}
    s_lshl_b32 s{sT2}, s{sNT}, 7
    s_add_u32 s{sT1}, s{sT1}, s{sT2}
    s_lshl_b32 s{sT2}, s{sW}, 19
    s_add_u32 s{sB[3]}, s{sT1}, s{sT2}
    s_lshr_b32 s{sT1}, s{sJ}, 1
    s_lshl_b32 s{sT1}, s{sT1}, 17
    s_add_u32 s{sTCH}, s{sTCH}, s{sT1}
    s_and_b32 s{sT1}, s{sJ}, 1
    s_lshl_b32 s{sT1}, s{sT1}, 14
    s_add_u32 s{sTCH}, s{sTCH}, s{sT1}
    v_lshrrev_b32 v{vT}, 2, v{vLane}
    v_and_b32 v{vT+6}, 3, v{vLane}
    v_lshlrev_b32 v{vT+1}, 7, v{vT+6}
    v_lshl_add_u32 v{vTch}, v{vT}, 10, v{vT+1}
    s_cmp_lt_u32 s{sW}, {OPT['w1n']}
    s_cselect_b32 s{sT1}, 21, 30
    s_lshl_b32 s{sT1}, s{sW}, s{sT1}
    v_add_u32 v{vT+7}, s{sT1}, v{vTch}
    s_lshl_b32 s{sT1}, s{sW}, {0 if OPT['tm'] else 30}
    {'; ' if OPT['tm'] else ''}v_add_u32 v{vTch}, s{sT1}, v{vTch}
    v_lshlrev_b32 v{vT+8}, 8, v{vT}
    v_lshl_add_u32 v{vT+8}, v{vT+6}, 4, v{vT+8}
    s_lshl_b32 s{sT1}, s{sQ}, 6
    v_add_u32 v{vT+8}, s{sT1}, v{vT+8}
    v_lshrrev_b32 v{vT+10}, 3, v{vLane}
    v_lshlrev_b32 v{vT+10}, 8, v{vT+10}
    s_xor_b32 s{sT1}, s{sT1}, 0x80
    s_lshl_b32 s{sT2}, s{sT0}, 11
    s_add_u32 s{sT2}, s{sT2}, s{sT1}
    s_lshl_b32 s{sTAG}, s{sMT}, 7
    s_add_u32 s{sTAG}, s{sTAG}, {FB + 4096}
    """)
    for r, size in ((rIDX, 409600), (rTAB, 256000), (rW1, 13107200), (rWP, 20000), (rWS, FB + 8192)):
        A.I(f"s_mov_b32 s{r+2}, {size}\ns_mov_b32 s{r+3}, 0x20000")
    A.I(f"""
    v_bfe_u32 v{vT}, v{vLane}, 4, 1
    v_bfe_u32 v{vT+1}, v{vLane}, 3, 1
    v_lshl_add_u32 v{vT}, v{vT}, 3, v{vT+1}
    v_and_b32 v{vT+2}, 7, v{vLane}
    v_lshlrev_b32 v{vT+2}, 4, v{vT+2}
    v_lshl_add_u32 v{vT}, v{vT}, 10, v{vT+2}
    v_lshrrev_b32 v{vT+2}, 5, v{vLane}
    v_lshl_add_u32 v{vB0}, v{vT+2}, 18, v{vT}
    v_lshl_add_u32 v{vT+3}, v{vT+2}, 14, v{vT}
    v_add_u32 v{vB1}, 4096, v{vB0}
    v_mov_b32 v{vSel}, 0x05040100
    v_mov_b32 v{vT+6}, 0x03020706
    v_cmp_eq_u32 vcc, 1, v{vT+1}
    s_add_u32 s{sB[0]}, s{sB[3]}, 16384
    s_add_u32 s{sB[1]}, s{sB[3]}, 131072
    v_cndmask_b32 v{vSel}, v{vSel}, v{vT+6}, vcc
    s_add_u32 s{sB[2]}, s{sB[3]}, {131072 + 16384}
    v_mov_b32 v{vZero}, 0
    s_add_u32 s{sT3}, s{sIB}, s{sIC}
    s_and_b32 s{sFI}, s{sFI}, 63
    s_mul_i32 m0, s{sFI}, 1040
    s_lshl_b32 s{sT1}, s{sFI}, 12
    s_waitcnt lgkmcnt(0)
    """)
    def ptr(r, p): A.I(f"s_mov_b32 s{r}, s{p}\ns_mov_b32 s{r+1}, s{p+1}")
    def icload(k):
        A.vm(('ic', k), f"buffer_load_dwordx4 {vr(IC + 4*k)}, v{vXld}, {srd(rIDX)}, s{sT3} offen" + pm(1))
        if k < 12: A.I(f"""
        s_add_u32 s{sIC}, s{sIC}, 4096
        s_cmp_eq_u32 s{sIC}, {13*4096}
        s_cselect_b32 s{sIC}, 0, s{sIC}
        s_add_u32 s{sT3}, s{sIB}, s{sIC}
        """)
    def fill(i):
        if i: A.I(f"""
        s_add_u32 s{sFI}, s{sFI}, 4
        s_and_b32 s{sFI}, s{sFI}, 63
        s_mul_i32 m0, s{sFI}, 1040
        s_lshl_b32 s{sT1}, s{sFI}, 12
        """)
        A.vm('fill', f"buffer_load_dwordx4 v{vT+8}, {srd(rTAB)}, s{sT1} offen{pm(2)} lds")
    def conv(k):
        A.wait(vm=[('ic', k)])
        if OPT['pst'] and k in (0, 6): stamp(A)
        b = IC + 4 * k
        A.I(f"""
        v_perm_b32 v{b}, v{b+1}, v{b}, v{vT+14}
        v_perm_b32 v{b+1}, v{b+3}, v{b+2}, v{vT+14}
        v_add_u32 v{b+2}, s{sIW}, v{vT+12}
        v_pk_mul_lo_u16 v{b}, v{b}, v{vT+13}
        v_pk_mul_lo_u16 v{b+1}, v{b+1}, v{vT+13}
        s_add_u32 s{sIW}, s{sIW}, 2048
        v_and_b32 v{b}, 0xfff0fff0, v{b}
        s_cmp_eq_u32 s{sIW}, {13*2048}
        v_and_b32 v{b+1}, 0xfff0fff0, v{b+1}
        s_cselect_b32 s{sIW}, 0, s{sIW}
        """)
        A.ds('icw', f"ds_write_b64 v{b+2}, {vr(b, 2)}")
    ptr(rIDX, sIDXP); icload(0)
    ptr(rTAB, sTABP); fill(0)
    ptr(rW1, sW1P)
    if OPT['touch']: A.vm('tch', f"buffer_load_dword v{vDum}, v{vT+7}, {srd(rW1)}, s{sTCH} offen" + pm(4))
    icload(1); icload(2)
    if OPT['itouch']: A.vm('tch', f"buffer_load_dword v{vDum}, v{vT+10}, {srd(rTAB)}, s{sT2} offen" + pm(8))
    A.vm('b2', f"global_load_ushort v224, v{vZero}, {sp(sB2P)}" + pm(32))
    stamp(A)
    ptr(rWP, sWPP); ptr(rWS, sWSP)
    sSA, sSB, sSC = 98, 99, 100
    SL = []
    if OPT['sc']:
        SL += [f"s_buffer_load_dwordx2 s[96:97], {srd(rW1)}, s{sSC} offset:{(i >> 2)*1024 + (i & 3)*128 + 60}" for i in range(16)]
    SL += [f"s_load_dword s{sTAG}, {sp(sWSP)}, s{sTAG}",
           f"s_buffer_load_dwordx2 s[96:97], {srd(rWP)}, s{sSA} offset:60",
           f"s_buffer_load_dwordx2 s[96:97], {srd(rWP)}, s{sSA} offset:{16384+60}",
           f"s_load_dwordx2 s[96:97], {sp(sB1P)}, s{sSB} offset:60",
           f"s_load_dwordx2 s[96:97], {sp(sW2P)}, s{sSB} offset:60"]
    def sbatch(k=7):
        for _ in range(k):
            if SL: A.I(SL.pop(0))
    A.I(f"""
    s_add_u32 s{sTCH}, s{sTCH}, {FSTEP * OPT['w1n']}
    s_lshl_b32 s{sSC}, s{sW}, 12
    s_add_u32 s{sSC}, s{sSC}, s{sTCH}
    s_lshl_b32 s{sSA}, s{sT0}, 7
    s_and_b32 s{sSB}, s{sSA}, 0x380
    """)
    sbatch()
    A.I(f"""
    v_mov_b32 v{TMP}, 0
    v_mov_b32 v{TMP+1}, 0
    v_mov_b32 v{TMP+2}, 0
    v_mov_b32 v{TMP+3}, 0
    v_lshlrev_b32 v{vT+12}, 3, v0
    v_add_u32 v{vT+12}, {L_IDX}, v{vT+12}
    v_mov_b32 v{vT+13}, 0x00410041
    v_mov_b32 v{vT+14}, 0x05040100
    """)
    for i in range(2): A.I(f"v_mfma_f32_32x32x16_bf16 {vr(ACC0 + 16*i, 16)}, {vr(TMP)}, {vr(TMP)}, 0")
    for i in range(6): A.I(f"v_mfma_f32_32x32x16_bf16 {ar(16*i, 16)}, {vr(TMP)}, {vr(TMP)}, 0")
    A.I(f"""
    v_and_b32 v{vT+1}, 15, v{vLane}
    v_mul_u32_u24 v{vT}, 200, v{vT+1}
    v_lshrrev_b32 v{vT+2}, 5, v{vLane}
    v_lshlrev_b32 v{vT+5}, 2, v{vT+2}
    v_add_u32 v{vT}, v{vT}, v{vT+5}
    s_lshl_b32 s{sT0}, s{sW}, 3
    s_add_u32 s{sT0}, s{sT0}, {L_IDX}
    s_mul_i32 s{sT2}, s{sW}, 6
    v_add_u32 v{vT+5}, s{sT2}, v{vT+5}
    s_lshl_b32 s{sWM}, s{sW}, 10
    s_add_u32 s{sWM}, s{sWM}, {L_W}
    v_and_b32 v{vG0}, 16, v{vLane}
    """)
    for i in range(4):
        A.I(f"""
        s_add_u32 s{sT2}, s{sW}, {i}
        s_and_b32 s{sT2}, s{sT2}, 3
        s_mul_i32 s{sT2}, s{sT2}, 6400
        s_add_u32 s{sT2}, s{sT2}, s{sT0}
        v_add_u32 v{vIA[i]}, s{sT2}, v{vT}
        """)
    A.I(f"""
    s_lshl_b32 s{sT0}, s{sNT}, 2
    s_add_u32 s{sT0}, s{sT0}, s{sQ}
    s_lshl_b32 s{sT2}, s{sMT}, 5
    s_add_u32 s{sT2}, s{sT2}, s{sT0}
    s_lshl_b32 s{sXL[0]}, s{sT2}, 14
    s_mov_b32 s{sPO}, s{sXL[0]}
    s_lshl_b32 s{sT2}, s{sT2}, 2
    s_add_u32 s{sT2}, s{sT2}, s{sW}
    s_mul_i32 s{sIE}, s{sT2}, 400
    s_add_u32 s{sI6}, s{sIE}, 384
    v_and_b32 v{vEoff}, 48, v{vLane}
    s_lshl_b32 s{sEM0}, s{sW}, 12
    s_add_u32 s{sEM0}, s{sEM0}, {L_E}
    v_lshrrev_b32 v{vT+2}, 2, v{vEoff}
    v_xor_b32 v{vT+2}, v{vT+2}, v{vT+1}
    v_lshlrev_b32 v{vCpre[0]}, 4, v{vT+2}
    v_xor_b32 v{vCpre[1]}, 16, v{vCpre[0]}
    v_xor_b32 v{vCpre[2]}, 32, v{vCpre[0]}
    v_xor_b32 v{vCpre[3]}, 48, v{vCpre[0]}
    v_lshrrev_b32 v{vT+2}, 4, v{vLane}
    v_xor_b32 v{vT+2}, v{vT+2}, v{vT+1}
    v_lshlrev_b32 v{vT+2}, 4, v{vT+2}
    v_and_b32 v{vT+6}, 3, v{vLane}
    v_lshl_add_u32 v{vT+2}, v{vT+6}, 10, v{vT+2}
    v_lshrrev_b32 v{vT+6}, 2, v{vT+1}
    v_lshl_add_u32 v{vT+2}, v{vT+6}, 8, v{vT+2}
    v_add_u32 v{vEr[0]}, s{sEM0}, v{vT+2}
    v_xor_b32 v{vEr[1]}, 64, v{vEr[0]}
    v_xor_b32 v{vEr[2]}, 0x80, v{vEr[0]}
    v_xor_b32 v{vEr[3]}, 0xc0, v{vEr[0]}
    v_mov_b32 v{vPois}, -1
    v_mov_b32 v{vPois+1}, -1
    v_mov_b32 v{vPois+2}, -1
    v_mov_b32 v{vPois+3}, -1
    s_lshr_b32 s{sT0}, s{sXL[0]}, 10
    s_lshl_b32 s{sT2}, s{sW}, 2
    s_add_u32 s{sT0}, s{sT0}, s{sT2}
    s_add_u32 s{sT0}, s{sT0}, {FB}
    v_mov_b32 v{vT}, s{sT0}
    s_lshl_b32 s{sT0}, s{sMT}, 9
    s_lshl_b32 s{sT2}, s{sW}, 7
    s_add_u32 s{sT2}, s{sT2}, s{sT0}
    s_add_u32 s{sT2}, s{sT2}, {FB}
    v_and_b32 v{vT+2}, 31, v{vLane}
    v_lshlrev_b32 v{vT+2}, 2, v{vT+2}
    v_add_u32 v{vT+2}, s{sT2}, v{vT+2}
    """)
    A.I(f"""
    s_sub_u32 s{sT0}, s{sEM0}, {L_E - L_IDX}
    v_lshlrev_b32 v{vT+6}, 4, v{vLane}
    v_add_u32 v{vW}, s{sT0}, v{vT+6}
    v_and_b32 v{vXst}, 4, v{vLane}
    v_lshl_add_u32 v{vXst}, v{vXst}, 12, v{vEoff}
    v_and_b32 v{vT+9}, 3, v{vLane}
    v_lshl_add_u32 v{vXst}, v{vT+9}, 10, v{vXst}
    v_and_b32 v{vT+9}, 8, v{vLane}
    v_lshl_add_u32 v{vXst}, v{vT+9}, 3, v{vXst}
    """)
    for tau in (1, 2, 3):
        A.I(f"""
        s_sub_u32 s{sT0}, s{sW}, {tau}
        s_and_b32 s{sT0}, s{sT0}, 3
        s_lshl_b32 s{sT0}, s{sT0}, 12
        s_add_u32 s{sT0}, s{sT0}, {L_IDX}
        v_add_u32 v{vR[tau]}, s{sT0}, v{vT+6}
        """)
    if OPT['pst']: stamp(A)
    for k in range(3, 13):
        if k == OPT['sc2']: sbatch()
        icload(k)
    for t in range(4): bload(A, 0, t, sB[3])
    ieload(A, 0); A.I(f"s_add_u32 s{sIE}, s{sIE}, 64")
    if OPT['b1pos'] == 0:
        for t in range(4): bload(A, 1, t, sB[0])
    for i in range(1, 16):
        if i == OPT['sc3']: sbatch()
        if i <= 13: conv(i - 1)
        fill(i)
    if OPT['b1pos'] == 1:
        for t in range(4): bload(A, 1, t, sB[0])
    if OPT['bar0'] & 2:
        for t in range(4): bload(A, 2, t, sB[1])
    if OPT['bar0']:
        A.I("s_barrier")
        touch(A); A.I(f"s_add_u32 s{sTCH}, s{sTCH}, {FSTEP}")
    stamp(A)
    assert not SL
    assert A.wait(ds=['icw'], vm=[('raw', 0, 3), ('ie', 0)])[1] == 0
    A.I(f"s_add_u32 s{sTAG}, s{sTAG}, 0x9E3779B9\ns_mov_b32 s{sWO}, 0\nv_mov_b32 v{vT+1}, s{sTAG}")
    A.I(f"s_and_b32 s{sKEY}, s{sJ}, 3\ns_lshl_b32 s{sKEY}, s{sKEY}, 2\ns_add_u32 s{sKEY}, s{sKEY}, s{sW}")
    for t in range(4):
        for d in range(4): A.I(xf_dpp(0, t, d))
        for d in range(4): A.I(xf_perm(0, t, d))
    for i in range(4):
        A.I(f"v_lshl_add_u32 v{vDma[i]}, v{vIE+i}, 8, v{vCpre[i]}")
    A.I(f"s_add_u32 s{sB[3]}, s{sB[3]}, {FSTEP}")
    if OPT['pst']: stamp(A)
    A.wait(vm=['fill'])
    if OPT['pst']: stamp(A)
    A.I("s_barrier")
    stamp(A)
    if OPT['b1pos'] == 2:
        for t in range(4): bload(A, 1, t, sB[0])
    for T in range(8): idxread(A, 0, T)
    if not OPT['bar0'] & 2:
        for t in range(4): bload(A, 2, t, sB[1])
    for T in range(8):
        if T % 4 == 0: A.wait(ds=[('idx', 0, T + 3)])
        A.I(addr_op(T, 0))
        embread(A, 0, T)
    for i in range(4): A.I(f"v_add_u32 v{vIA[i]}, 32, v{vIA[i]}")
    for t in range(4): bload(A, 3, t, sB[2])
    if not OPT['defer']:
        for t in range(4): bload(A, 4, t, sB[3])
    ieload(A, 1); A.I(f"s_add_u32 s{sIE}, s{sIE}, 64")
    for _ in range(OPT['tpost']):
        touch(A); A.I(f"s_add_u32 s{sTCH}, s{sTCH}, {FSTEP}")
    A.I(f"s_add_u32 s{sB[0]}, s{sB[0]}, {FSTEP}\ns_add_u32 s{sB[1]}, s{sB[1]}, {FSTEP}\ns_add_u32 s{sB[2]}, s{sB[2]}, {FSTEP}")
    if OPT['tskip']: A.I(f"s_add_u32 s{sTCH}, s{sTCH}, {FSTEP * OPT['tskip']}")
    A.wait(ds=[('emb', 0, 0), ('emb', 0, 1)], vm=[('raw', 1, 0)])
    stamp(A)

def tail(A):
    stamp(A)
    HB = IDX; W2F = ADDR
    vB2v = 224; vT6 = vT + 12; M = vT + 13
    vP = vT + 16; vP2 = vT + 17; vWt = vT + 18; vWn = vT + 19; vOut = vT + 20; vSh = vT + 21
    PK = 72; GR = BF + 16; XL = BF; SEL = 212; DP = 220
    H = 64; T1 = 176; T2 = 184
    sM1, sM2, sMc = 50, 52, 54
    sXS4 = [sXS, sT1, sT2, sT3]
    ST = ('F', stamp)
    BFA = {20: BF, 21: BF + 16, 22: RAW + 16, 23: RAW + 32, 24: RAW + 48}
    RAWA = {21: RAW + 16, 22: RAW + 32, 23: RAW + 48, 24: RAW}
    order = [2, 4, 3, 5, 6, 7, 0, 1]
    G1 = order[:4]
    units = [(s_, T) for s_ in range(20, 25) for T in G1] + [(s_, T) for T in order[4:] for s_ in range(20, 25)]
    def ereg(s_, T):
        if s_ == 20 or T in G1: return vr(EMB + 4*T)
        if T == order[4]: return vr((212, 216, 220, 20)[s_ - 21])
        return ar(192 + 16 * order[4:].index(T) + 4 * (s_ - 21))
    G = [Gp(f"v_mfma_f32_16x16x32_bf16 {acc(T, d)}, {vr(BFA[s_] + 4*d)}, {ereg(s_, T)}, {acc(T, d)}") for s_, T in units for d in range(4)]
    def erd(s_, T):
        ad = ADDR + T if s_ == 21 else (IDX + T if s_ < 24 else A24 + T)
        return ('DS', ('e', s_, T), f"ds_read_b128 {ereg(s_, T)}, v{ad}" + (" offset:32" if s_ & 1 else ""))
    aop = lambda T: I(f"v_add_u32_sdwa v{IDX+T}, v{IDX+T}, v{vG0} dst_sel:DWORD dst_unused:UNUSED_PAD src0_sel:WORD_1 src1_sel:DWORD")
    A.wait(ds=[('emb', 20, G1[0])], vm=[('raw', 21, 3)])
    for ui, (s_, T) in enumerate(units):
        if ui:
            vm = [('raw', s_ + 1, 3)] if ui < 16 and ui % 4 == 0 else []
            G[4*ui - 1].add(('W', None, [('emb', 20, T) if s_ == 20 else ('e', s_, T)], vm))
        if ui < 16: G[4*ui + 3].add(erd(s_ + 1, T))
    for s_ in range(21, 25):
        L = []
        for d in range(4):
            L += [f"v_mov_b32_dpp v{TMP+t}, v{RAWA[s_] + 4*t + d} row_ror:8 row_mask:0xf bank_mask:0xf" for t in range(4)]
            L += [f"v_perm_b32 v{BFA[s_] + 4*d + t}, v{TMP+t}, v{RAWA[s_] + 4*t + d}, v{vSel}" for t in range(4)]
        for i, x in enumerate(L): G[16 * (s_ - 21) + (i * 17 // 32 if s_ == 24 else i // 2)].add(I(x))
    for i, T in enumerate(order): G[2 * i].add(aop(T))
    lt = [(s_, T) for s_ in (21, 24, 22, 23) for T in order[4:]]
    for i, u in enumerate(lt): G[4 * i + 1].add(erd(*u))
    G[17].add(('W', None, [('eread', 4)], []))
    for i in range(4):
        G[17 + 4*i].add(I(f"s_mov_b32 m0, s{sEM0}" if i == 0 else "s_add_u32 m0, m0, 1024"))
        G[18 + 4*i].add(('VM', 'dma5', f"buffer_load_dwordx4 v{vDma[i]}, {srd(rTAB)}, 0 offen lds"))
    G[65].add(('W', None, [], ['dma5']))
    for ks in range(4): G[65 + ks // 2].add(('DS', 'er5', f"ds_read_b128 {ar(AE + 80 + 4*ks)}, v{vEr[ks]}"))
    kfin = {T: 4 * units.index((24, T)) for T in range(8)}
    kst = {T: 4 * units.index((20, T)) for T in range(2)}
    islot = [3, 2, 0, 1, 3, 0]
    pools = [[64, 68, 72, 76], [168, 172, 176, 180]]
    VQ = []
    k = kfin[order[0]] + OPT['w0d']
    kbar = []
    def reads(i, k):
        T = order[i]; h = T & 1
        for d in range(4):
            q = pools[i & 1][d]
            G[k].add(('DS', ('ir', i, d), f"ds_read_b128 {vr(q)}, v{vR[T >> 1]} offset:{16384*islot[i] + 1024*d}"))
            ke = k + OPT['rl'] + d
            if ke + 2 >= kst[h] + d: ke = max(ke, kfin[h] + d + 3)
            VQ.append((ke, ('W', None, [('ir', i, d)], [])))
            a_ = ACC0 + 16*h + 4*d
            if i == 5 and OPT['pk']: VQ.extend((ke, I(f"v_pk_add_f32 {vr(a_ + r, 2)}, {vr(a_ + r, 2)}, {vr(q + r, 2)}")) for r in (0, 2))
            else: VQ.extend((ke, I(f"v_add_f32 v{a_ + r}, v{a_ + r}, v{q + r}")) for r in range(4))
        G[k].lock = True
    def pub(T, D0, D1, D2):
        ke = kfin[T] + 6
        def cv(dst, kap, x):
            r = 2 * kap + (x >> 1); d = 2 * (x & 1)
            VQ.append((ke, I(f"v_cvt_pk_bf16_f32 v{dst}, v{ACC0 + 16*T + 4*d + r}, v{ACC0 + 16*T + 4*d + 4 + r}")))
        for x in range(4): cv(D1 + x, 1, x)
        for x in range(4): cv(D0 + x, 0, x)
        for x in range(4): VQ.append((ke, I(f"v_mov_b32_dpp v{D0+x}, v{D1+x} row_ror:8 row_mask:0xf bank_mask:0xc")))
        VQ.append((ke, ('VM', 'xst', f"buffer_store_dwordx4 {vr(D0)}, v{vXst}, {srd(rWS)}, s{sXS4[2*T]} offen sc1")))
        for x in range(4): cv(D2 + x, 0, x)
        for x in range(4): VQ.append((ke, I(f"v_mov_b32_dpp v{D1+x}, v{D2+x} row_ror:8 row_mask:0xf bank_mask:0x3")))
        VQ.append((ke, ('VM', 'xst', f"buffer_store_dwordx4 {vr(D1)}, v{vXst}, {srd(rWS)}, s{sXS4[2*T+1]} offen sc1")))
    def bar(i, k):
        G[k].add(('W', None, [('iw', i)] + [('ir', j, d) for j in range(i) for d in range(4)], ['wdma'] if i == 3 else []))
        if not OPT['fab'] & 1: G[k].add(I("s_barrier"))
        if OPT['fab'] & 2: G[k].S.pop(0)
        if OPT['bst'] == 1 and i in (0, 2, 4, 5): G[k].add(ST)
        kbar.append(k)
    for i in range(6):
        T = order[i]
        for d in range(4):
            assert k >= kfin[T] + d + 3
            assert G[k].n() == 0, (k, G[k].M, G[k].V)
            G[k].add(('DS', ('iw', i), f"ds_write_b128 v{vW}, {acc(T, d)} offset:{16384*islot[i] + 1024*d}")); G[k].lock = True
            k += 3
            if i and d == OPT['blag'] - 1:
                bar(i - 1, k - 1); reads(i - 1, k); k += 1
    pub(0, 184, 188, 192)
    k += OPT['bl5']
    bar(5, k - 1); reads(5, k)
    pub(1, 160, 164, 20)
    fill(G, items(f"""
    s_lshl_b32 s{sXS}, s{sMT}, 2
    s_add_u32 s{sXS}, s{sXS}, s{sW}
    s_lshl_b32 s{sXS}, s{sXS}, 17
    s_lshl_b32 s{sT0}, s{sQ}, 12
    s_add_u32 s{sXS}, s{sXS}, s{sT0}
    s_lshl_b32 s{sT0}, s{sNT}, 7
    s_add_u32 s{sXS}, s{sXS}, s{sT0}
    s_add_u32 s{sT1}, s{sXS}, 32768
    s_add_u32 s{sT2}, s{sXS}, 65536
    s_add_u32 s{sT3}, s{sXS}, 98304
    s_add_u32 s{sXL[1]}, s{sXL[0]}, 4096
    s_add_u32 s{sXL[2]}, s{sXL[0]}, 8192
    s_add_u32 s{sXL[3]}, s{sXL[0]}, 12288
    s_mov_b32 s{sCNT}, 0x10000
    """), 64)
    fill(G, items(f"""
    v_lshrrev_b32 v{vP}, 3, v{vLane}
    v_lshlrev_b32 v{vP}, 7, v{vP}
    v_and_b32 v{vT+15}, 1, v{vLane}
    v_lshl_add_u32 v{vP}, v{vT+15}, 6, v{vP}
    v_bfe_u32 v{vT+15}, v{vLane}, 2, 1
    v_lshl_add_u32 v{vP}, v{vT+15}, 5, v{vP}
    VM:misc global_load_dwordx4 {vr(HB)}, v{vP}, {sp(sB1P)}
    VM:misc global_load_dwordx4 {vr(HB+4)}, v{vP}, {sp(sB1P)} offset:16
    VM:misc global_load_dwordx4 {vr(W2F)}, v{vP}, {sp(sW2P)}
    VM:misc global_load_dwordx4 {vr(W2F+4)}, v{vP}, {sp(sW2P)} offset:16
    """), 64)
    kx = fill(G, items(f"""
    v_and_b32 v{vP2}, 15, v{vLane}
    v_mul_u32_u24 v{vWt}, 200, v{vP2}
    v_lshrrev_b32 v{vP2}, 1, v{vEoff}
    v_add3_u32 v{vWt}, v{vWt}, v{vP2}, s{sWO}
    v_lshrrev_b32 v{vP2}, 2, v{vLane}
    v_mul_u32_u24 v{vWn}, 200, v{vP2}
    v_lshlrev_b32 v{vP2}, 1, v{vT+7}
    v_add3_u32 v{vWn}, v{vWn}, v{vP2}, s{sWO}
    """), 70)
    G[64].add(I(f"s_mov_b32 s{sWO}, {L_W}"))
    G[34].add(('VM', 'cnt', f"buffer_load_dword v{vCnt}, v{vT+2}, {srd(rWS)}, 0 offen sc1"))
    kx = OPT['kchk']
    while G[kx].lock: kx += 1
    G[kx].add(('W', None, [], ['cnt'])); G[kx].add(I(f"v_cmp_ne_u32 vcc, s{sTAG}, v{vCnt}"))
    G[kx + 3].add(I("s_cbranch_vccnz Lchk\nLchkok:"))
    def place(x, k, cap):
        g = G[k]
        if x[0] == 'W':
            if g.lock or g.n() >= cap or g.V: return False
        elif g.lock or g.n() >= cap or (x[0] != 'I' and g.n()): return False
        g.add(x); return True
    for k in range(64, 160):
        while VQ and VQ[0][0] <= k and place(VQ[0][1], k, OPT['va'] if k >= OPT['vak'] else 2):
            x = VQ.pop(0)[1]
            if x[0] == 'I' and x[1].startswith('v_add_f32'):
                a_ = int(x[1].split()[1][1:-1]) - ACC0; T = a_ >> 4; d = (a_ >> 2) & 3
                assert not (kst[T] + d <= k < kfin[T] + d + 3), (k, x)
    seq = [x for g in G for x in g.S + g.M + g.V] + [x[1] for x in VQ]
    for i in range(2, 6):
        for d in range(4):
            q = pools[i & 1][d]
            pr = [j for j, x in enumerate(seq) if x[0] == 'DS' and x[1] == ('ir', i, d)][0]
            pw = [j for j, x in enumerate(seq) if x[0] == 'W' and x[2] == [('ir', i - 2, d)]][0]
            la = [j for j, x in enumerate(seq) if j > pw and x[0] == 'I' and x[1].startswith('v_add_f32') and x[1].endswith(f", v{q+3}")][0]
            assert la < pr, (i, d)
    if OPT['bst'] == 2:
        for k in (22, 46, 66): G[k].add(ST)
    if WT.mode == 'emit':
        print("barriers", kbar, "chk", kx, "VQ left", len(VQ))
        print(''.join(str(min(9, g.n())) if not g.lock else ('W' if g.n() == 1 else 'R') for g in G))
    for g in G:
        if OPT['fab'] & 4: g.M = [x for x in g.M if x[1][0] != 'ir']
        if OPT['fab'] & 8: g.M = [x for x in g.M if x[1][0] != 'iw']
        if OPT['fab'] & 16: g.S = [x for x in g.S if x[0] != 'W' or not x[3]]
        if OPT['fab'] & 32: g.S = [x for x in g.S if x[0] != 'W']
        egap(A, g)
    stamp(A)
    off5 = [(t, u) for u in range(6) for t in range(u)]; dg5 = [(u, u) for u in range(6)]
    slots = dg5 + off5 + [(6, 6)] + [(t, 6) for t in range(6)]
    slot = {x: i for i, x in enumerate(slots)}
    last = off5[-1]
    comp = [(t, u) for u in range(6) for t in range(u + 1) if (t, u) != last] + [last, (6, 6)] + [(t, 6) for t in range(6)]
    C = []
    for p in range(14):
        for k in range(8):
            i = 2 * p + (k & 1); ks = k >> 1; t, u = comp[i]; g = GR + 4 * (i & 3)
            C.append(Gp(f"v_mfma_f32_16x16x32_bf16 {vr(g)}, {ar(AE + 16*t + 4*ks)}, {ar(AE + 16*u + 4*ks)}, " + ("0" if ks == 0 else vr(g))))
    ops = []; rd = []
    areg = [4 * i for i in range(24)] + [208]
    for p in range(14):
        for o in range(2):
            tl = slots[2*p: 2*p+2]
            if o == 1 and tl[0][0] == tl[0][1]: continue
            a = areg[len(ops)]
            for h, (t, u) in enumerate(tl):
                if o == 0: rd.append(('DS', 'wf', f"ds_read_b64 {ar(a + 2*h, 2)}, v{vWt} offset:{u*3200 + t*32}"))
                elif t < u: rd.append(('DS', 'wf', f"ds_read_b64_tr_b16 {ar(a + 2*h, 2)}, v{vWn} offset:{t*3200 + u*32}"))
                else: rd += [I(f"v_accvgpr_write_b32 a{a + 2*h}, 0"), I(f"v_accvgpr_write_b32 a{a + 2*h + 1}, 0")]
            ops.append((p, a))
    assert len(ops) == 25
    for j, (p, a) in enumerate(ops):
        C.append(Gp(f"v_mfma_f32_16x16x32_bf16 {vr(DP)}, {vr(PK + 4*p)}, {ar(a)}, " + ("0" if j == 0 else vr(DP))))
    g0 = OPT['gpre']
    if OPT['rv'] == 0:
        rest = [x[1] for x in VQ]
        def restf(A):
            for x in rest: do(A, x)
            stamp(A)
        if g0: C[g0 - 1].add(('F', restf)); C[g0 - 1].lock = True
        else: restf(A)
        k = g0
    else:
        G = C; k = g0
        while VQ:
            if place(VQ[0][1], k, OPT['rv']): VQ.pop(0)
            else: k += 1
        k += 1
        C[k].add(ST)
    for i in range(28):
        g = GR + 4 * (i & 3); pk = PK + 2 * slot[comp[i]]
        for h in range(2):
            C[8 * (i >> 1) + 11 + 2 * (i & 1) + h].add(I(f"v_cvt_pk_bf16_f32 v{pk+h}, v{g+2*h}, v{g+2*h+1}"))
    pa = OPT['pollat']
    for q in range(4):
        C[pa + q].add(('VM', 'xl', f"buffer_load_dwordx4 {vr(XL + 4*q)}, v{vXld}, {srd(rWS)}, s{sXL[q]} offen sc1"))
    k1 = fill(C, rd, k)
    assert k1 < 100
    C[111].add(('W', None, ['wf'], []))
    misc = f"""
    s_mov_b32 s{sM1}, 0xaaaaaaaa
    s_mov_b32 s{sM1+1}, 0xaaaaaaaa
    s_mov_b32 s{sM2}, 0xcccccccc
    s_mov_b32 s{sM2+1}, 0xcccccccc
    s_mov_b32 s{sMc}, 0x00f0000f
    s_mov_b32 s{sMc+1}, 0xf0000f00
    v_mov_b32 v{M}, 0x3f80
    v_mov_b32 v{SEL}, 0x3f800000
    v_cndmask_b32 v{M}, v{M}, v{SEL}, {sp(sM1)}
    v_mov_b32 v{SEL}, 0
    v_cndmask_b32 v{M}, v{SEL}, v{M}, {sp(sMc)}
    v_mov_b32 v{SEL+1}, 0
    v_mov_b32 v{SEL+4}, 0
    v_mov_b32 v{SEL+5}, 0
    v_cndmask_b32 v{SEL+2}, v{M}, v{SEL}, {sp(sM2)}
    v_cndmask_b32 v{SEL+3}, v{SEL}, v{M}, {sp(sM2)}
    v_cndmask_b32 v{vSh}, 16, v{SEL}, {sp(sM2)}
    s_lshr_b32 s{sT0}, s{sXL[0]}, 12
    s_add_u32 s{sT0}, s{sT0}, s{sW}
    s_lshl_b32 s{sT1}, s{sT0}, 1
    v_mov_b32 v{vOut}, s{sT1}
    s_and_b32 s{sT0}, s{sT0}, 127
    s_mov_b32 s{sCNT}, 0x10000
    WAIT:misc
    v_lshlrev_b32 v{vB2v}, 16, v{vB2v}
    v_mov_b32 v{vP2}, 0
    """
    for i in range(8): misc += f"v_lshlrev_b32 v{W2F + i}, v{vSh}, v{W2F + i}\nv_lshlrev_b32 v{HB + i}, v{vSh}, v{HB + i}\n"
    for i in range(8): misc += f"v_and_b32 v{W2F + i}, 0xffff0000, v{W2F + i}\nv_and_b32 v{HB + i}, 0xffff0000, v{HB + i}\n"
    k2 = fill(C, items(misc), k)
    if WT.mode == 'emit': print(k, k1, k2, ''.join(str(min(9, g.n())) for g in C))
    assert OPT['fab'] or OPT['abl'] or ('t6' not in A.vmq and 'er5' not in A.dsq)
    for g in C: egap(A, g)
    stamp(A)
    def xloads(tag):
        for q in range(4):
            A.vm(tag, f"buffer_load_dwordx4 {vr(XL + 4*q)}, v{vXld}, {srd(rWS)}, s{sXL[q]} offen sc1")
    A.I(f"""
    v_cndmask_b32 v{vP}, v{DP}, v{DP+1}, {sp(sM1)}
    v_cndmask_b32 v{DP}, v{DP+2}, v{DP+3}, {sp(sM1)}
    v_cndmask_b32 v{vP}, v{vP}, v{DP}, {sp(sM2)}
    v_cndmask_b32 v{vP}, 0, v{vP}, {sp(sMc)}
    """)
    if OPT['xtest']:
        A.I(f"s_bfe_u32 s{sT1}, s{sXL[0]}, 0x2000f\ns_cmp_eq_u32 s{sT1}, 3\ns_cselect_b32 s{sCNT}, s{sCNT}, 0")
    A.I("Lpoll:")
    mx = [f"v_max3_u32 v{M}, v{XL}, v{XL+1}, v{XL+2}"] + [f"v_max3_u32 v{M}, v{M}, v{XL+i}, v{XL+i+1}" for i in range(3, 15, 2)] + [f"v_max_u32 v{M}, v{M}, v{XL+15}"]
    for q in range(4):
        A.I(f"s_waitcnt vmcnt({3-q})")
        for h in range(2):
            A.I(f"v_mfma_f32_16x16x32_bf16 {vr(H + 4*h)}, {vr(SEL + 2 - 2*h)}, {vr(XL + 4*q)}, {vr((HB if q == 0 else H) + 4*h)}")
            if q or h: A.I(mx.pop(0))
    A.I(mx.pop(0)); assert not mx
    A.I(f"""
    v_cmp_eq_u32 vcc, -1, v{M}
    s_sub_u32 s{sCNT}, s{sCNT}, 1
    s_cbranch_scc1 Lpollok
    s_cbranch_vccz Lpollok
    """)
    if OPT['slp']: A.I(f"s_sleep {OPT['slp']}")
    if OPT['mask']: A.I("s_mov_b64 exec, vcc")
    xloads('xl2')
    if OPT['mask']: A.I("s_mov_b64 exec, -1")
    A.I("s_branch Lpoll\nLpollok:")
    A.vmq = []
    stamp(A)
    c1 = 2 * 0.7978845608028654 * 1.4426950408889634; c2 = c1 * 0.044715
    A.I(f"v_mov_b32 v{M}, 0x{f2u(c1):08x}\ns_nop 1")
    for i in range(8): A.I(f"v_mul_f32 v{T1+i}, v{H+i}, v{H+i}")
    for i in range(8): A.I(f"v_fmamk_f32 v{T1+i}, v{T1+i}, 0x{f2u(c2):08x}, v{M}")
    for i in range(8): A.I(f"v_mul_f32 v{T1+i}, v{T1+i}, v{H+i}")
    for i in range(8): A.I(f"v_exp_f32 v{T1+i}, -v{T1+i}")
    for i in range(8): A.I(f"v_mul_f32 v{T2+i}, v{H+i}, v{W2F+i}")
    for i in range(8): A.I(f"v_add_f32 v{T1+i}, 1.0, v{T1+i}")
    for i in range(8): A.I(f"v_rcp_f32 v{T1+i}, v{T1+i}")
    for i in range(8): A.I(f"v_fmac_f32 v{vP if i & 1 else vP2}, v{T1+i}, v{T2+i}")
    A.I(f"""
    v_add_f32 v{vP}, v{vP}, v{vP2}
    v_add_f32_dpp v{vP}, v{vP}, v{vP} quad_perm:[1,0,3,2] row_mask:0xf bank_mask:0xf
    v_add_f32_dpp v{vP}, v{vP}, v{vP} quad_perm:[2,3,0,1] row_mask:0xf bank_mask:0xf
    v_add_f32_dpp v{vP}, v{vP}, v{vP} row_ror:4 row_mask:0xf bank_mask:0xf
    v_add_f32_dpp v{vP}, v{vP}, v{vP} row_ror:8 row_mask:0xf bank_mask:0xf
    v_mov_b32 v{vP2}, v{vP}
    v_permlane16_swap_b32 v{vP}, v{vP2}
    v_add_f32 v{vP}, v{vP}, v{vP2}
    v_mov_b32 v{vP2}, v{vP}
    v_permlane32_swap_b32 v{vP}, v{vP2}
    v_add_f32 v{vP}, v{vP}, v{vB2v}
    v_add_f32 v{vP}, v{vP}, v{vP2}
    v_cvt_pk_bf16_f32 v{vP}, v{vP}, v{vP}
    s_mov_b64 exec, 1
    global_store_short v{vOut}, v{vP}, {sp(sOUTP)}
    s_cmp_lg_u32 s{sT0}, 0
    s_cbranch_scc1 Ldone
    s_lshl_b32 s{sT1}, s{sMT}, 7
    s_add_u32 s{sT1}, s{sT1}, {FB + 4096}
    buffer_store_dword v{vT+1}, v{vZero}, {srd(rWS)}, s{sT1} offen sc1
    Ldone:
    s_mov_b64 exec, -1
    """)
    if OPT['stamps'] == 3:
        stamp(A)
        A.I(f"s_waitcnt lgkmcnt(0)\ns_not_b32 s{sST}, s{sST}")
        for i, k in enumerate([0, 2, 3, 5, 6, 8, 9, 10]):
            A.I(f"v_writelane_b32 v{T1}, s{sST+2*k}, {i}")
        A.I(f"""
        v_lshlrev_b32 v{M}, 3, v{vLane}
        s_mov_b64 exec, 0xff
        global_atomic_umax v{M}, v{T1}, {sp(sDBGP)} offset:4 sc1
        """)
    elif OPT['stamps']:
        stamp(A)
        A.I(f"""
        s_waitcnt lgkmcnt(0)
        s_mov_b64 exec, 1
        s_lshl_b32 s{sT0}, s2, 2
        s_add_u32 s{sT0}, s{sT0}, s{sW}
        s_mul_i32 s{sT0}, s{sT0}, {8*nst[0]}
        s_add_u32 s{sT0}, s{sT0}, {8<<20}
        v_mov_b32 v{M}, s{sT0}
        """)
        for i in range(nst[0]):
            A.I(f"v_mov_b32 v{T1}, s{sST+2*i}\nv_mov_b32 v{T1+1}, s{sST+2*i+1}\nglobal_store_dwordx2 v{M}, {vr(T1,2)}, {sp(sWSP)} offset:{8*i}\ns_nop 1")
    A.I(f"""
    Lend:
    s_endpgm
    Lchk:
    buffer_load_dword v{vCnt}, v{vT+2}, {srd(rWS)}, 0 offen sc1
    s_sub_u32 s{sCNT}, s{sCNT}, 1
    s_cbranch_scc1 Lchkok
    s_waitcnt vmcnt(0)
    v_cmp_ne_u32 vcc, s{sTAG}, v{vCnt}
    s_cbranch_vccnz Lchk
    s_branch Lchkok
    s_endpgm
    """)

def build(WT):
    nst[0] = 0
    A = Asm(); segs = {}
    def seg(name, f, *a):
        st = len(A.L); f(A, *a); segs[name] = A.L[st:]
    seg('pro', prologue)
    for m in range(NIT):
        seg(f'body{m}', body, m, WT)
        seg(f'side{m}', side, m)
    seg('tail', tail)
    return segs

WT = W(); build(WT); WT.mode = 'emit'; segs = build(WT)
b0 = [i.text for i in segs['body0']]
for m in range(1, NIT): assert [i.text for i in segs[f'body{m}']] == b0, m
pro, _ = check(segs['pro'], pad=True)
bodyI = segs['body0']
jump = [Ins(f"s_setpc_b64 {sp(sSJ)}")] if NSQ < 16 else []
_, v = check(pro + bodyI, label='pro+body'); assert not v, v
sides = []
for m in range(NIT):
    s = segs[f'side{m}']
    prev = bodyI + jump if NSQ < 16 else (sides[-1] if m else pro)
    _, v = check(prev + s, label=f'side{m}'); assert not v, v
    if m < NIT - 1 and NSQ < 16:
        s = s + [Ins("s_branch Lloop")]
        _, v = check(s + bodyI, label=f'side{m}+body'); assert not v, v
    sides.append(s)
full, _ = check(sides[NIT-1] + segs['tail'], pad=True)
tailI = full[len(sides[NIT-1]):]
def txt(L): return ''.join(('' if i.cls == 'label' else '  ') + i.text + '\n' for i in L)
out = f"""; deep_cross_pnn: split-K MFMA GEMM with LDS-resident table quarter + Gram (PNN) tail
; @launch grid=(256,1,1) block=(256,1,1) lds={L_TOTAL}
.amdgcn_target "amdgcn-amd-amdhsa--gfx950"
.text
.globl {KN}
.p2align 8
.type {KN},@function
{KN}:
"""
out += txt(pro) + "Lloop:\n" + txt(bodyI + jump)
for m in range(NIT):
    out += f"Lside{m}:\n" + txt(sides[m])
out += txt(tailI)
out += footer(512, 256, 102)
open(sys.argv[1], 'w').write(out)

print("body instrs", len(bodyI), "pro", len(pro), "tail", len(tailI), "stamps", nst[0])
```
